```python
import torch

def _softmax(x, axis=-1):
    return torch.softmax(x, dim=axis)
def _gelu(x):
    return torch.nn.functional.gelu(x, approximate="tanh")
def _silu(x):
    return torch.nn.functional.silu(x)
def _sigmoid(x):
    return torch.sigmoid(x)
def _layernorm(x, axis=-1, eps=1e-5):
    m = x.mean(dim=axis, keepdim=True)
    v = x.var(dim=axis, keepdim=True, unbiased=False)
    return (x - m) / torch.sqrt(v + eps)
def _scatter_add(tgt, idx, src, axis=0):
    return tgt.clone().index_add_(axis, idx, src)
def _segment_sum(src, seg, n):
    out = torch.zeros((n,) + src.shape[1:], dtype=src.dtype)
    return out.index_add_(0, seg, src)
def _pad(x, pw):
    flat = tuple(v for pair in reversed(pw) for v in pair)
    return torch.nn.functional.pad(x, flat)

kernel_name = 'standalone__kv_cache_quant_int4_int2_kv_with_per_channel_or_per_token_scales__prompt'

def setup_inputs():

    _w = (lambda a: (lambda t: t.to(torch.bfloat16) if t.is_floating_point() else t)(torch.as_tensor(a)))
    B = 1
    Sq = 2048
    Skv = 2048
    Hq = 32
    Hkv = 8
    Dh = 128
    bits = 8
    G = 64
    if G <= 0 or G >= Skv:
        G = max(1, Skv // 2)
    Skv = (Skv // G) * G
    ngk = Skv // G
    qmax = (1 << bits) - 1
    return {
        "q": _w((lambda *s: torch.randn(*s, dtype=torch.bfloat16) * 0.2)(B, Hq, Sq, Dh)),
        "qk": _w(torch.randint(0, qmax + 1, (B, Hkv, Skv, Dh)).to(torch.int32)),
        "qv": _w(torch.randint(0, qmax + 1, (B, Hkv, Skv, Dh)).to(torch.int32)),
        "k_scales": _w(torch.abs((lambda *s: torch.randn(*s, dtype=torch.bfloat16) * 0.2)(B, Hkv, ngk, Dh)) * 0.05 + 0.02),
        "k_zeros": _w((lambda *s: torch.randn(*s, dtype=torch.bfloat16) * 0.2)(B, Hkv, ngk, Dh) + float(qmax) / 2.0),
        "v_scales": _w(torch.abs((lambda *s: torch.randn(*s, dtype=torch.bfloat16) * 0.05)(B, Hkv, Skv, 1)) * 0.05 + 0.02),
        "v_zeros": _w((lambda *s: torch.randn(*s, dtype=torch.bfloat16) * 0.05)(B, Hkv, Skv, 1) + float(qmax) / 2.0),
    }

def reference(q, qk, qv, k_scales, k_zeros, v_scales, v_zeros):
    B, Hq, Sq, Dh = q.shape
    Hkv, Skv = qk.shape[1], qk.shape[2]
    ngk = k_scales.shape[2]
    G = Skv // ngk
    ks = (lambda x, n, axis: torch.repeat_interleave(x, n, dim=axis))(k_scales, G, axis=2)
    kz = (lambda x, n, axis: torch.repeat_interleave(x, n, dim=axis))(k_zeros, G, axis=2)
    k = ((lambda x, dt: x.to(dt))(qk, q.dtype) - kz) * ks
    v = ((lambda x, dt: x.to(dt))(qv, q.dtype) - v_zeros) * v_scales
    rep = Hq // Hkv
    if rep > 1:
        k = (lambda x, n, axis: torch.repeat_interleave(x, n, dim=axis))(k, rep, axis=1)
        v = (lambda x, n, axis: torch.repeat_interleave(x, n, dim=axis))(v, rep, axis=1)
    scale = float(Dh) ** -0.5
    logits = torch.einsum("bhqd,bhkd->bhqk", q, k) * scale
    p = _softmax(logits, axis=-1)
    o = torch.einsum("bhqk,bhkd->bhqd", p, v)
    return o
```

```python
import re


def regs(spec):
    out = []
    for s in spec if isinstance(spec, (list, tuple)) else [spec]:
        m = re.fullmatch(r"([vas])\[(\d+):(\d+)\]", s)
        if m:
            out += [f"{m.group(1)}{i}" for i in range(int(m.group(2)), int(m.group(3)) + 1)]
        else:
            out.append(s)
    return out


def rr(kind, lo, n):
    return f"{kind}{lo}" if n == 1 else f"{kind}[{lo}:{lo + n - 1}]"


class Inst:
    __slots__ = ("text", "kind", "rd", "wr", "srcc", "ws", "passes", "xs")

    def __init__(self, text, kind, rd=(), wr=(), srcc=(), ws=1, passes=0, xs=None):
        self.text = text
        self.kind = kind
        self.rd = set(regs(list(rd)))
        self.wr = set(regs(list(wr)))
        self.srcc = set(regs(list(srcc)))
        self.ws = ws
        self.passes = passes
        self.xs = xs


VALU_KINDS = ("valu", "trans", "perm")


def need_ws(p, c):
    n = 0
    pv = p.kind in VALU_KINDS
    cv = c.kind in VALU_KINDS
    if pv and c.kind == "mfma" and (p.wr & (c.rd | c.srcc)):
        n = max(n, 2)
    if p.kind == "mfma":
        D = p.wr
        big = {4: 8, 8: 12}[p.passes]
        ovl = {4: 6, 8: 10}[p.passes]
        if c.kind == "mfma":
            if D & c.rd:
                n = max(n, big)
            if D & c.srcc:
                if not (c.srcc == D and c.passes == p.passes):
                    n = max(n, ovl)
        elif c.kind in VALU_KINDS or c.kind in ("ds", "vmem", "store"):
            if D & (c.rd | c.wr):
                n = max(n, big)
        if cv and (p.srcc & c.wr):
            n = max(n, {4: 3, 8: 7}[p.passes])
    if p.kind == "trans" and (cv or c.kind == "mfma") and c.kind != "trans" and (p.wr & (c.rd | c.wr | c.srcc)):
        n = max(n, 1)
    if pv and c.kind == "perm" and (p.wr & (c.rd | c.wr)):
        n = max(n, 2)
    sw = {r for r in p.wr if r[0] == "s" or r == "vcc"}
    if pv and sw:
        if cv and (sw & c.rd):
            n = max(n, 2)
        if c.kind in ("vmem", "store", "ds") and (sw & c.rd):
            n = max(n, 5)
        if c.kind == "salu" and (sw & c.rd):
            n = max(n, 1)
    if pv and c.kind == "valu" and "readlane" in c.text and (p.wr & c.rd):
        n = max(n, 1)
    if p.kind == "salu" and "m0" in p.wr and c.kind == "vmem" and "m0" in c.rd:
        n = max(n, 1)
    if p.kind == "store" and (p.rd & c.wr) and c.kind != "salu":
        n = max(n, 2)
    return n


class Asm:
    def __init__(self):
        self.ins = []

    def raw(self, text):
        self.ins.append(Inst(text, "label", ws=0))

    def label(self, name):
        self.ins.append(Inst(name + ":", "label", ws=0, xs="label"))

    def comment(self, text):
        self.ins.append(Inst("; " + text, "label", ws=0))

    def add(self, inst):
        self.ins.append(inst)

    def valu(self, text, rd=(), wr=()):
        self.add(Inst(text, "valu", rd, wr))

    def trans(self, text, rd=(), wr=()):
        self.add(Inst(text, "trans", rd, wr))

    def salu(self, text, rd=(), wr=()):
        self.add(Inst(text, "salu", rd, wr))

    def other(self, text, rd=(), wr=()):
        self.add(Inst(text, "other", rd, wr))

    def nop(self, n):
        while n > 0:
            k = min(n, 16)
            self.add(Inst(f"s_nop {k - 1}", "other", ws=k))
            n -= k

    def pad_hazards(self, lookback=24, verbose=False):
        out = []
        npad = 0
        for c in self.ins:
            if c.kind != "label":
                need = 0
                dist = 0
                for p in reversed(out):
                    if p.kind == "label":
                        continue
                    n = need_ws(p, c)
                    if n > dist:
                        need = max(need, n - dist)
                    dist += p.ws
                    if dist >= lookback:
                        break
                if need:
                    npad += 1
                    if verbose:
                        print("pad", need, "before", c.text)
                    k = need
                    while k > 0:
                        kk = min(k, 16)
                        out.append(Inst(f"s_nop {kk - 1}", "other", ws=kk, xs="pad"))
                        k -= kk
            out.append(c)
        self.ins = out
        return npad

    def text(self):
        lines = []
        for i in self.ins:
            if i.kind == "label":
                lines.append(i.text)
            else:
                lines.append("    " + i.text)
        return "\n".join(lines) + "\n"
```

```python
import math
import struct
import sys

from asmlib import Asm, Inst, rr

NAME = "standalone__kv_cache_quant_int4_int2_kv_with_per_channel_or_per_token_scales__prompt"
MAIN = NAME + "_kernel"
PREP = "kvq_prep_kernel"


def f32bits(x):
    return struct.unpack("<I", struct.pack("<f", x))[0]


CSCALE = (128.0 ** -0.5) * math.log2(math.e)
THR = 65536.0

KWS = 0
VWS = 4 << 20
WS_BYTES = 8 << 20
HEAD_BYTES = 64 * 8192

R = 8


def gen_prep():
    a = Asm()
    a.label(PREP)
    a.salu("s_cmp_ge_u32 s2, 2048", ["s2"], ["scc"])
    a.other("s_cbranch_scc1 L_prep_done")
    a.salu("s_load_dwordx4 s[4:7], s[0:1], 8", [], ["s4", "s5", "s6", "s7"])
    a.salu("s_load_dwordx8 s[8:15], s[0:1], 24", [], ["s[8:15]"])
    a.salu("s_load_dwordx2 s[16:17], s[0:1], 72", [], ["s16", "s17"])
    a.valu("v_lshrrev_b32 v1, 6, v0", ["v0"], ["v1"])
    a.valu("v_and_b32 v0, 63, v0", ["v0"], ["v0"])
    a.valu("v_readfirstlane_b32 s18, v1", ["v1"], ["s18"])
    a.valu("v_and_b32 v2, 15, v0", ["v0"], ["v2"])
    a.valu("v_lshrrev_b32 v3, 4, v0", ["v0"], ["v3"])
    a.valu("v_lshlrev_b32 v4, 4, v0", ["v0"], ["v4"])
    a.salu("s_lshl_b32 s19, s2, 2", ["s2"], ["s19"])
    a.salu("s_add_u32 s19, s19, s18", ["s19", "s18"], ["s19"])
    a.other("s_waitcnt lgkmcnt(0)")
    a.salu("s_mov_b32 s20, s16", [], ["s20"])
    a.salu("s_mov_b32 s21, s17", [], ["s21"])
    a.salu(f"s_mov_b32 s22, {WS_BYTES}", [], ["s22"])
    a.salu("s_mov_b32 s23, 0x00020000", [], ["s23"])
    a.salu("s_lshl_b32 s24, s19, 10", ["s19"], ["s24"])
    a.salu("s_cmp_ge_u32 s19, 4096", ["s19"], ["scc"])
    a.other("s_cbranch_scc1 L_prep_v")

    def srd(base, lo, nbytes):
        a.salu(f"s_mov_b32 s{base}, s{lo}", [], [f"s{base}"])
        a.salu(f"s_mov_b32 s{base + 1}, s{lo + 1}", [], [f"s{base + 1}"])
        a.salu(f"s_mov_b32 s{base + 2}, {nbytes}", [], [f"s{base + 2}"])
        a.salu(f"s_mov_b32 s{base + 3}, 0x00020000", [], [f"s{base + 3}"])

    def round_pairs(src, dst):
        for k in range(4):
            a.valu(f"v_cvt_pk_bf16_f32 v{dst[k]}, v{src[2 * k]}, v{src[2 * k + 1]}",
                   [f"v{src[2 * k]}", f"v{src[2 * k + 1]}"], [f"v{dst[k]}"])
        for k in range(4):
            a.valu(f"v_lshlrev_b32 v{src[2 * k]}, 16, v{dst[k]}", [f"v{dst[k]}"], [f"v{src[2 * k]}"])
            a.valu(f"v_and_b32 v{src[2 * k + 1]}, 0xffff0000, v{dst[k]}", [f"v{dst[k]}"], [f"v{src[2 * k + 1]}"])

    def unpack(src, dst):
        for k in range(4):
            a.valu(f"v_lshlrev_b32 v{dst[2 * k]}, 16, v{src[k]}", [f"v{src[k]}"], [f"v{dst[2 * k]}"])
            a.valu(f"v_and_b32 v{dst[2 * k + 1]}, 0xffff0000, v{src[k]}", [f"v{src[k]}"], [f"v{dst[2 * k + 1]}"])

    X = list(range(16, 24))
    Z = list(range(24, 32))
    SC = list(range(32, 40))
    T = list(range(40, 44))

    def dequant(scale_c):
        for k in range(8):
            a.valu(f"v_cvt_f32_i32 v{X[k]}, v{X[k]}", [f"v{X[k]}"], [f"v{X[k]}"])
        round_pairs(X, T)
        for k in range(8):
            a.valu(f"v_sub_f32 v{X[k]}, v{X[k]}, v{Z[k]}", [f"v{X[k]}", f"v{Z[k]}"], [f"v{X[k]}"])
        round_pairs(X, T)
        for k in range(8):
            a.valu(f"v_mul_f32 v{X[k]}, v{X[k]}, v{SC[k]}", [f"v{X[k]}", f"v{SC[k]}"], [f"v{X[k]}"])
        if scale_c:
            round_pairs(X, T)
            for k in range(8):
                a.valu(f"v_mul_f32 v{X[k]}, 0x{f32bits(CSCALE):08x}, v{X[k]}", [f"v{X[k]}"], [f"v{X[k]}"])
        for k in range(4):
            a.valu(f"v_cvt_pk_bf16_f32 v{T[k]}, v{X[2 * k]}, v{X[2 * k + 1]}",
                   [f"v{X[2 * k]}", f"v{X[2 * k + 1]}"], [f"v{T[k]}"])
        a.add(Inst("buffer_store_dwordx4 v[40:43], v4, s[20:23], s24 offen", "store",
                   ["v[40:43]", "v4", "s[20:23]", "s24"], []))

    srd(28, 4, 8388608)
    srd(32, 8, 65536)
    srd(36, 10, 65536)
    a.salu("s_lshr_b32 s25, s19, 2", ["s19"], ["s25"])
    a.salu("s_lshl_b32 s25, s25, 13", ["s25"], ["s25"])
    a.salu("s_and_b32 s26, s19, 3", ["s19"], ["s26"])
    a.salu("s_lshl_b32 s27, s26, 7", ["s26"], ["s27"])
    a.salu("s_add_u32 s25, s25, s27", ["s25", "s27"], ["s25"])
    a.valu("v_lshlrev_b32 v5, 9, v2", ["v2"], ["v5"])
    a.valu("v_lshl_add_u32 v5, v3, 5, v5", ["v3", "v5"], ["v5"])
    a.add(Inst("buffer_load_dwordx4 v[16:19], v5, s[28:31], s25 offen", "vmem", ["v5", "s[28:31]", "s25"], ["v[16:19]"]))
    a.add(Inst("buffer_load_dwordx4 v[20:23], v5, s[28:31], s25 offen offset:16", "vmem", ["v5", "s[28:31]", "s25"], ["v[20:23]"]))
    a.salu("s_lshr_b32 s25, s19, 4", ["s19"], ["s25"])
    a.salu("s_lshl_b32 s25, s25, 8", ["s25"], ["s25"])
    a.salu("s_lshl_b32 s27, s26, 6", ["s26"], ["s27"])
    a.salu("s_add_u32 s25, s25, s27", ["s25", "s27"], ["s25"])
    a.valu("v_lshlrev_b32 v6, 4, v3", ["v3"], ["v6"])
    a.add(Inst("buffer_load_dwordx4 v[8:11], v6, s[32:35], s25 offen", "vmem", ["v6", "s[32:35]", "s25"], ["v[8:11]"]))
    a.add(Inst("buffer_load_dwordx4 v[12:15], v6, s[36:39], s25 offen", "vmem", ["v6", "s[36:39]", "s25"], ["v[12:15]"]))
    a.other("s_waitcnt vmcnt(0)")
    unpack([8, 9, 10, 11], SC)
    unpack([12, 13, 14, 15], Z)
    dequant(True)
    a.other("s_endpgm")

    a.label("L_prep_v")
    srd(28, 6, 8388608)
    srd(32, 12, 32768)
    srd(36, 14, 32768)
    a.salu("s_sub_u32 s19, s19, 4096", ["s19"], ["s19"])
    a.salu("s_lshr_b32 s25, s19, 3", ["s19"], ["s25"])
    a.salu("s_lshl_b32 s26, s25, 6", ["s25"], ["s26"])
    a.salu("s_lshl_b32 s25, s25, 14", ["s25"], ["s25"])
    a.salu("s_and_b32 s27, s19, 7", ["s19"], ["s27"])
    a.salu("s_lshl_b32 s27, s27, 6", ["s27"], ["s27"])
    a.salu("s_add_u32 s25, s25, s27", ["s25", "s27"], ["s25"])
    a.salu("s_add_u32 s27, s25, 8192", ["s25"], ["s27"])
    a.valu("v_lshlrev_b32 v5, 11, v3", ["v3"], ["v5"])
    a.valu("v_lshl_add_u32 v5, v2, 2, v5", ["v2", "v5"], ["v5"])
    for j in range(8):
        so = "s25" if j < 4 else "s27"
        a.add(Inst(f"buffer_load_dword v{X[j]}, v5, s[28:31], {so} offen offset:{512 * (j & 3)}", "vmem",
                   ["v5", "s[28:31]", so], [f"v{X[j]}"]))
    a.valu("v_lshlrev_b32 v6, 3, v3", ["v3"], ["v6"])
    a.add(Inst("buffer_load_dwordx2 v[8:9], v6, s[32:35], s26 offen", "vmem", ["v6", "s[32:35]", "s26"], ["v[8:9]"]))
    a.add(Inst("buffer_load_dwordx2 v[10:11], v6, s[32:35], s26 offen offset:32", "vmem", ["v6", "s[32:35]", "s26"], ["v[10:11]"]))
    a.add(Inst("buffer_load_dwordx2 v[12:13], v6, s[36:39], s26 offen", "vmem", ["v6", "s[36:39]", "s26"], ["v[12:13]"]))
    a.add(Inst("buffer_load_dwordx2 v[14:15], v6, s[36:39], s26 offen offset:32", "vmem", ["v6", "s[36:39]", "s26"], ["v[14:15]"]))
    a.other("s_waitcnt vmcnt(0)")
    unpack([8, 9, 10, 11], SC)
    unpack([12, 13, 14, 15], Z)
    dequant(False)
    a.label("L_prep_done")
    a.other("s_endpgm")
    a.pad_hazards()
    return a.text()


def S(buf, tb, qb):
    return 16 + buf * 32 + tb * 16 + qb * 4


def P(buf, qb):
    return 80 + buf * 16 + qb * 4


def NEGM(qb):
    return 112 + qb * 4


def TMP(pair):
    return 128 + 2 * (pair % 4)


def PS(buf, qb):
    return 136 + buf * 4 + qb


def L(qb):
    return 144 + qb


CHK = 148


def O(db, qb):
    return (db * 4 + qb) * 4


def Q(qb, ks):
    return 128 + (qb * 4 + ks) * 4


def RING(F):
    return 192 + 4 * (F % R)


class Main:
    def __init__(self):
        self.a = Asm()
        self.reads = []
        self.nslow = 0
        self.tramps = []

    def mfma(self, D, A, B, C):
        srcc = [] if C == "0" else [C]
        self.a.add(Inst(f"v_mfma_f32_16x16x32_bf16 {D}, {A}, {B}, {C}", "mfma", [A, B], [D], srcc=srcc, passes=4))

    def ds_read_frag(self, F):
        slot = (F // 32) % 4
        n = F % 32
        off = slot * 32768 + n * 1024
        base = "v1" if off < 65536 else "v2"
        off %= 65536
        d = rr("a", RING(F), 4)
        self.a.add(Inst(f"ds_read_b128 {d}, {base} offset:{off}", "ds", [base], [d]))
        self.reads.append(F)

    def wait_frag(self, F):
        idx = self.reads.index(F)
        n = len(self.reads) - 1 - idx
        self.a.other(f"s_waitcnt lgkmcnt({n})")

    def exp(self, dst, src):
        self.a.trans(f"v_exp_f32 v{dst}, v{src}", [f"v{src}"], [f"v{dst}"])

    def add(self, dst, x, y):
        self.a.valu(f"v_add_f32 v{dst}, v{x}, v{y}", [f"v{x}", f"v{y}"], [f"v{dst}"])

    def cvt(self, dst, x, y):
        self.a.valu(f"v_cvt_pk_bf16_f32 v{dst}, v{x}, v{y}", [f"v{x}", f"v{y}"], [f"v{dst}"])

    @staticmethod
    def pair_info(pi):
        return pi >> 3, (pi >> 1) & 3, pi & 1

    def sm_exp(self, buf, pi, which):
        tb, qb, hf = self.pair_info(pi)
        self.exp(TMP(pi) + which, S(buf, tb, qb) + 2 * hf + which)

    def sm_add_a(self, buf, pi):
        tb, qb, hf = self.pair_info(pi)
        if tb == 0 and hf == 0:
            return False
        self.add(PS(buf, qb), PS(buf, qb), TMP(pi))
        return True

    def sm_add_b(self, buf, pi):
        tb, qb, hf = self.pair_info(pi)
        if tb == 0 and hf == 0:
            self.add(PS(buf, qb), TMP(pi), TMP(pi) + 1)
        else:
            self.add(PS(buf, qb), PS(buf, qb), TMP(pi) + 1)

    def sm_cvt(self, buf, pi):
        tb, qb, hf = self.pair_info(pi)
        self.cvt(P(buf, qb) + 2 * tb + hf, TMP(pi), TMP(pi) + 1)

    def cycle(self, u, F0, has_qk=True, has_sm=True, has_next=True, lacc=True, extra=None, last_read=None):
        a = self.a
        cur = (u + 1) % 2
        nxt = u % 2
        extra = extra or {}
        lacc_q = [0, 1, 2, 3] if lacc else []
        for g in range(16):
            F = F0 + g
            phaseA = g < 8
            do_mfma = phaseA or has_qk
            if g <= 14:
                pb, pi = cur, g + 1
                pvalid = has_sm
            else:
                pb, pi = nxt, 0
                pvalid = has_next
            qb_, qi = cur, g
            qvalid = has_sm
            for m in range(4):
                if do_mfma:
                    fr = rr("a", RING(F), 4)
                    if phaseA:
                        d = rr("a", O(g, m), 4)
                        self.mfma(d, fr, rr("v", P(nxt, m), 4), d)
                    else:
                        tb, ks = (g - 8) >> 2, (g - 8) & 3
                        d = rr("v", S(nxt, tb, m), 4)
                        c = rr("v", NEGM(m), 4) if ks == 0 else d
                        self.mfma(d, fr, rr("a", Q(m, ks), 4), c)
                for fn in extra.get((g, m), []):
                    fn()
                if m == 0:
                    Fn = F + R - 1
                    if self.frag_needed(Fn) and (last_read is None or Fn <= last_read):
                        self.ds_read_frag(Fn)
                    if qvalid:
                        self.sm_add_b(qb_, qi)
                elif m == 1:
                    if pvalid:
                        self.sm_exp(pb, pi, 0)
                    if g == 0 and lacc_q:
                        q = lacc_q.pop(0)
                        self.add(L(q), L(q), PS(nxt, q))
                elif m == 2:
                    if qvalid:
                        self.sm_cvt(qb_, qi)
                    did = self.sm_add_a(pb, pi) if pvalid else False
                    if not did:
                        if g == 15:
                            if has_sm:
                                a.valu(f"v_max3_f32 v{CHK}, v{PS(cur, 0)}, v{PS(cur, 1)}, v{PS(cur, 2)}",
                                       [f"v{PS(cur, 0)}", f"v{PS(cur, 1)}", f"v{PS(cur, 2)}"], [f"v{CHK}"])
                        elif lacc_q:
                            q = lacc_q.pop(0)
                            self.add(L(q), L(q), PS(nxt, q))
                else:
                    Fw = F + 1
                    if Fw in self.reads and self.frag_needed(Fw):
                        self.wait_frag(Fw)
                    if pvalid:
                        self.sm_exp(pb, pi, 1)
                    if g == 15 and has_sm:
                        a.valu(f"v_max_f32 v{CHK}, v{CHK}, v{PS(cur, 3)}", [f"v{CHK}", f"v{PS(cur, 3)}"], [f"v{CHK}"])
                        a.valu(f"v_cmp_lt_f32 vcc, s18, v{CHK}", ["s18", f"v{CHK}"], ["vcc"])
                        k = self.nslow
                        self.nslow += 1
                        a.other(f"s_cbranch_vccnz L_tramp_{k}", ["vcc"])
                        a.label(f"L_back_{k}")
                        self.tramps.append((k, cur))
        assert not lacc_q

    def frag_needed(self, F):
        if F >= 32 * 32:
            return False
        if F // 32 == 31 and ((F % 32) >> 3) in (1, 3):
            return False
        return True

    def iteration(self, i, dma=True, vm=8, barrier=True):
        a = self.a
        ex0 = {}
        ex1 = {}
        if barrier:
            def bar():
                a.other(f"s_waitcnt vmcnt({vm})")
                a.other("s_barrier")
            ex1[(4, 2)] = [bar]
        if dma:
            dslot = (i + 3) % 4
            for k in range(8):
                g = 5 + k
                fns = []
                if k == 0:
                    fns.append(lambda: a.salu(f"s_add_u32 m0, s20, {dslot * 32768}", ["s20"], ["m0", "scc"]))
                if k == 4:
                    fns.append(lambda: a.salu(f"s_add_u32 m0, s20, {dslot * 32768 + 4096}", ["s20"], ["m0", "scc"]))
                ex1.setdefault((g, 0), []).extend(fns)
                so = "s19" if k < 4 else "s21"
                ex1.setdefault((g, 1), []).append(
                    (lambda so=so, k=k: a.add(Inst(
                        f"buffer_load_dwordx4 v1, s[8:11], {so} offen offset:{1024 * (k & 3)} lds", "vmem",
                        ["v1", "s[8:11]", so, "m0"], []))))
            def adv():
                a.salu("s_add_u32 s19, s19, 16384", ["s19"], ["s19", "scc"])
                a.salu("s_add_u32 s21, s21, 16384", ["s21"], ["s21", "scc"])
            ex1.setdefault((14, 0), []).append(adv)
        u0 = 2 * i
        last = i == 31
        self.cycle(u0, 32 * i, has_qk=not last, has_sm=True, has_next=not last, extra=ex0)
        self.cycle(u0 + 1, 32 * i + 16, has_qk=not last, has_sm=not last, has_next=not last, extra=ex1)

    def rowmax(self, buf, qb, dst, t):
        a = self.a
        s0, s1 = S(buf, 0, qb), S(buf, 1, qb)
        a.valu(f"v_max3_f32 v{dst}, v{s0}, v{s0 + 1}, v{s0 + 2}", [f"v{s0}", f"v{s0 + 1}", f"v{s0 + 2}"], [f"v{dst}"])
        a.valu(f"v_max3_f32 v{dst}, v{dst}, v{s0 + 3}, v{s1}", [f"v{dst}", f"v{s0 + 3}", f"v{s1}"], [f"v{dst}"])
        a.valu(f"v_max3_f32 v{dst}, v{dst}, v{s1 + 1}, v{s1 + 2}", [f"v{dst}", f"v{s1 + 1}", f"v{s1 + 2}"], [f"v{dst}"])
        a.valu(f"v_max_f32 v{dst}, v{dst}, v{s1 + 3}", [f"v{dst}", f"v{s1 + 3}"], [f"v{dst}"])
        self.xlane(dst, t, "v_max_f32")

    def xlane(self, dst, t, op):
        a = self.a
        for sw in ("v_permlane16_swap_b32", "v_permlane32_swap_b32"):
            a.valu(f"v_mov_b32 v{t}, v{dst}", [f"v{dst}"], [f"v{t}"])
            a.add(Inst(f"{sw} v{dst}, v{t}", "perm", [f"v{dst}", f"v{t}"], [f"v{dst}", f"v{t}"]))
            a.valu(f"{op} v{dst}, v{dst}, v{t}", [f"v{dst}", f"v{t}"], [f"v{dst}"])

    def slow(self, cur):
        a = self.a
        nxt = 1 - cur
        a.label(f"L_slow_{cur}")
        a.nop(16)
        DL, FF, T0 = 150, 154, 158
        for qb in range(4):
            self.rowmax(cur, qb, DL + qb, T0)
            a.valu(f"v_ceil_f32 v{DL + qb}, v{DL + qb}", [f"v{DL + qb}"], [f"v{DL + qb}"])
            a.valu(f"v_max_f32 v{DL + qb}, 0, v{DL + qb}", [f"v{DL + qb}"], [f"v{DL + qb}"])
            a.trans(f"v_exp_f32 v{FF + qb}, -v{DL + qb}", [f"v{DL + qb}"], [f"v{FF + qb}"])
        for qb in range(4):
            d, f = DL + qb, FF + qb
            for r in range(4):
                x = NEGM(qb) + r
                a.valu(f"v_sub_f32 v{x}, v{x}, v{d}", [f"v{x}", f"v{d}"], [f"v{x}"])
            for b in (cur, nxt):
                for tb in range(2):
                    for r in range(4):
                        x = S(b, tb, qb) + r
                        a.valu(f"v_sub_f32 v{x}, v{x}, v{d}", [f"v{x}", f"v{d}"], [f"v{x}"])
            a.valu(f"v_mul_f32 v{L(qb)}, v{L(qb)}, v{f}", [f"v{L(qb)}", f"v{f}"], [f"v{L(qb)}"])
            for db in range(8):
                for r in range(4):
                    x = O(db, qb) + r
                    t = 160 + ((db * 4 + r) % 8)
                    a.valu(f"v_accvgpr_read_b32 v{t}, a{x}", [f"a{x}"], [f"v{t}"])
                    a.valu(f"v_mul_f32 v{t}, v{t}, v{f}", [f"v{t}", f"v{f}"], [f"v{t}"])
                    a.valu(f"v_accvgpr_write_b32 a{x}, v{t}", [f"v{t}"], [f"a{x}"])
        for pi in range(16):
            self.sm_exp(cur, pi, 0)
            self.sm_exp(cur, pi, 1)
            self.sm_add_a(cur, pi)
            self.sm_add_b(cur, pi)
            self.sm_cvt(cur, pi)
        self.sm_exp(nxt, 0, 0)
        self.sm_exp(nxt, 0, 1)
        a.nop(4)
        a.other("s_setpc_b64 s[40:41]", ["s40", "s41"])

    def gen(self):
        a = self.a
        a.label(MAIN)
        a.salu("s_cmp_ge_u32 s2, 256", ["s2"], ["scc"])
        a.other("s_cbranch_scc1 L_done")
        a.salu("s_load_dwordx2 s[24:25], s[0:1], 0", [], ["s24", "s25"])
        a.salu("s_load_dwordx2 s[26:27], s[0:1], 56", [], ["s26", "s27"])
        a.salu("s_load_dwordx2 s[28:29], s[0:1], 72", [], ["s28", "s29"])
        a.valu("v_lshrrev_b32 v3, 6, v0", ["v0"], ["v3"])
        a.valu("v_and_b32 v0, 63, v0", ["v0"], ["v0"])
        a.valu("v_readfirstlane_b32 s16, v3", ["v3"], ["s16"])
        a.valu("v_lshlrev_b32 v1, 4, v0", ["v0"], ["v1"])
        a.valu("v_add_u32 v2, 0x10000, v1", ["v1"], ["v2"])
        a.valu("v_add_u32 v3, 0x20000, v1", ["v1"], ["v3"])
        a.valu("v_and_b32 v4, 15, v0", ["v0"], ["v4"])
        a.valu("v_lshrrev_b32 v5, 4, v0", ["v0"], ["v5"])
        a.salu("s_and_b32 s30, s2, 7", ["s2"], ["s30"])
        a.salu("s_lshr_b32 s31, s2, 3", ["s2"], ["s31"])
        a.salu("s_and_b32 s32, s31, 3", ["s31"], ["s32"])
        a.salu("s_lshl_b32 s33, s30, 2", ["s30"], ["s33"])
        a.salu("s_add_u32 s33, s33, s32", ["s33", "s32"], ["s33"])
        a.salu("s_lshr_b32 s31, s31, 2", ["s31"], ["s31"])
        a.salu("s_lshl_b32 s33, s33, 19", ["s33"], ["s33"])
        a.salu("s_lshl_b32 s31, s31, 16", ["s31"], ["s31"])
        a.salu("s_add_u32 s33, s33, s31", ["s33", "s31"], ["s33"])
        a.salu("s_lshl_b32 s31, s16, 14", ["s16"], ["s31"])
        a.salu("s_add_u32 s33, s33, s31", ["s33", "s31"], ["s33"])
        a.salu("s_add_u32 s34, s33, 4096", ["s33"], ["s34"])
        a.salu("s_add_u32 s35, s33, 8192", ["s33"], ["s35"])
        a.salu("s_add_u32 s36, s33, 12288", ["s33"], ["s36"])
        a.salu(f"s_mov_b32 s18, 0x{f32bits(THR):08x}", [], ["s18"])
        a.salu("s_lshl_b32 s20, s16, 13", ["s16"], ["s20"])
        a.salu("s_lshl_b32 s30, s30, 19", ["s30"], ["s30"])
        a.salu("s_and_b32 s31, s16, 1", ["s16"], ["s31"])
        a.salu("s_lshr_b32 s32, s16, 1", ["s16"], ["s32"])
        a.salu("s_lshl_b32 s32, s32, 13", ["s32"], ["s32"])
        a.salu("s_add_u32 s19, s30, s32", ["s30", "s32"], ["s19"])
        a.salu("s_cmp_eq_u32 s31, 1", ["s31"], ["scc"])
        a.salu("s_movk_i32 s22, 0x4000", [], ["s22"])
        a.salu(f"s_cselect_b32 s32, s22, {VWS}", ["scc", "s22"], ["s32"])
        a.salu("s_add_u32 s19, s19, s32", ["s19", "s32"], ["s19"])
        a.salu("s_add_u32 s21, s19, 4096", ["s19"], ["s21"])
        a.salu("s_lshl_b32 s31, s16, 12", ["s16"], ["s31"])
        a.salu("s_add_u32 s30, s30, s31", ["s30", "s31"], ["s30"])
        a.salu("s_add_u32 s31, s31, 0x20000", ["s31"], ["s31"])
        a.valu("v_lshlrev_b32 v6, 8, v4", ["v4"], ["v6"])
        a.valu("v_lshl_add_u32 v6, v5, 4, v6", ["v5", "v6"], ["v6"])
        a.other("s_waitcnt lgkmcnt(0)")
        for base, lo, nb in ((4, 24, 16777216), (8, 28, WS_BYTES), (12, 26, 16777216)):
            a.salu(f"s_mov_b32 s{base}, s{lo}", [], [f"s{base}"])
            a.salu(f"s_mov_b32 s{base + 1}, s{lo + 1}", [], [f"s{base + 1}"])
            a.salu(f"s_mov_b32 s{base + 2}, {nb}", [], [f"s{base + 2}"])
            a.salu(f"s_mov_b32 s{base + 3}, 0x00020000", [], [f"s{base + 3}"])
        a.salu("s_mov_b32 m0, s31", ["s31"], ["m0"])
        a.nop(1)
        for k in range(4):
            a.add(Inst(f"buffer_load_dwordx4 v1, s[8:11], s30 offen offset:{1024 * k} lds", "vmem",
                       ["v1", "s[8:11]", "s30", "m0"], []))
        for qb in range(4):
            for ks in range(4):
                d = rr("a", Q(qb, ks), 4)
                so = ["s33", "s34", "s35", "s36"][qb]
                a.add(Inst(f"buffer_load_dwordx4 {d}, v6, s[4:7], {so} offen offset:{64 * ks}", "vmem",
                           ["v6", "s[4:7]", so], [d]))
        for sl in range(3):
            for hf in range(2):
                a.salu(f"s_add_u32 m0, s20, {sl * 32768 + hf * 4096}", ["s20"], ["m0", "scc"])
                a.nop(1)
                so = "s19" if hf == 0 else "s21"
                for k in range(4):
                    a.add(Inst(f"buffer_load_dwordx4 v1, s[8:11], {so} offen offset:{1024 * k} lds", "vmem",
                               ["v1", "s[8:11]", so, "m0"], []))
            a.salu("s_add_u32 s19, s19, 16384", ["s19"], ["s19", "scc"])
            a.salu("s_add_u32 s21, s21, 16384", ["s21"], ["s21", "scc"])
        for r in range(128):
            a.valu(f"v_accvgpr_write_b32 a{r}, 0", [], [f"a{r}"])
        for qb in range(4):
            a.valu(f"v_mov_b32 v{L(qb)}, 0", [], [f"v{L(qb)}"])
            a.valu(f"v_mov_b32 v{PS(1, qb)}, 0", [], [f"v{PS(1, qb)}"])
        a.other("s_waitcnt vmcnt(24)")
        a.other("s_barrier")
        for f in range(16):
            d = rr("a", 192 + 4 * f, 4)
            a.add(Inst(f"ds_read_b128 {d}, v3 offset:{1024 * f}", "ds", ["v3"], [d]))
        a.other("s_waitcnt lgkmcnt(8)")
        for f in range(8):
            tb, ks = f >> 2, f & 3
            for qb in range(4):
                d = rr("v", S(0, tb, qb), 4)
                self.mfma(d, rr("a", 192 + 4 * f, 4), rr("a", Q(qb, ks), 4), "0" if ks == 0 else d)
        a.nop(8)
        for qb in range(4):
            self.rowmax(0, qb, 150 + qb, 158)
        for qb in range(4):
            for r in range(4):
                a.valu(f"v_sub_f32 v{NEGM(qb) + r}, 0, v{150 + qb}", [f"v{150 + qb}"], [f"v{NEGM(qb) + r}"])
            for tb in range(2):
                for r in range(4):
                    x = S(0, tb, qb) + r
                    a.valu(f"v_sub_f32 v{x}, v{x}, v{150 + qb}", [f"v{x}", f"v{150 + qb}"], [f"v{x}"])
        a.other("s_waitcnt lgkmcnt(0)")
        pi = 0
        for f in range(8):
            tb, ks = f >> 2, f & 3
            for qb in range(4):
                d = rr("v", S(1, tb, qb), 4)
                self.mfma(d, rr("a", 192 + 4 * (8 + f), 4), rr("a", Q(qb, ks), 4),
                          rr("v", NEGM(qb), 4) if ks == 0 else d)
                if qb % 2 == 0:
                    self.sm_exp(0, pi, 0)
                    self.sm_exp(0, pi, 1)
                else:
                    self.sm_add_a(0, pi)
                    self.sm_add_b(0, pi)
                    self.sm_cvt(0, pi)
                    pi += 1
        assert pi == 16
        a.other("s_waitcnt vmcnt(16)")
        a.other("s_barrier")
        for F in range(R - 1):
            self.ds_read_frag(F)
        a.nop(4)
        self.sm_exp(1, 0, 0)
        self.sm_exp(1, 0, 1)
        self.wait_frag(0)
        a.salu("s_mov_b32 s17, 0", [], ["s17"])
        a.raw(".p2align 6")
        a.label("L_loop")
        for i in range(4):
            self.iteration(i)
        a.salu("s_add_u32 s17, s17, 1", ["s17"], ["s17", "scc"])
        a.salu("s_cmp_lt_u32 s17, 7", ["s17"], ["scc"])
        a.other("s_cbranch_scc1 L_loop")
        self.reads = [F + 24 * 32 for F in self.reads]
        self.iteration(28, dma=True, vm=8)
        self.iteration(29, dma=False, vm=8)
        self.iteration(30, dma=False, vm=0)
        self.iteration(31, dma=False, barrier=False)
        a.nop(8)
        for qb in range(4):
            self.xlane(L(qb), 158, "v_add_f32")
        for qb in range(4):
            a.trans(f"v_rcp_f32 v{L(qb)}, v{L(qb)}", [f"v{L(qb)}"], [f"v{L(qb)}"])
        a.valu("v_and_b32 v7, 1, v5", ["v5"], ["v7"])
        a.valu("v_lshrrev_b32 v8, 1, v5", ["v5"], ["v8"])
        a.valu("v_lshlrev_b32 v6, 8, v4", ["v4"], ["v6"])
        a.valu("v_lshl_add_u32 v6, v7, 5, v6", ["v7", "v6"], ["v6"])
        a.valu("v_lshl_add_u32 v6, v8, 4, v6", ["v8", "v6"], ["v6"])
        k = 0
        for qb in range(4):
            so = ["s33", "s34", "s35", "s36"][qb]
            for dp in range(4):
                tbase = 176 + (k % 4) * 16
                k += 1
                pk = tbase + 8
                for h in range(2):
                    db = 2 * dp + h
                    for r in range(4):
                        t = tbase + 4 * h + r
                        a.valu(f"v_accvgpr_read_b32 v{t}, a{O(db, qb) + r}", [f"a{O(db, qb) + r}"], [f"v{t}"])
                for j in range(8):
                    t = tbase + j
                    a.valu(f"v_mul_f32 v{t}, v{t}, v{L(qb)}", [f"v{t}", f"v{L(qb)}"], [f"v{t}"])
                for j in range(4):
                    self.cvt(pk + j, tbase + 2 * j, tbase + 2 * j + 1)
                a.add(Inst(f"v_permlane16_swap_b32 v{pk}, v{pk + 2}", "perm", [f"v{pk}", f"v{pk + 2}"], [f"v{pk}", f"v{pk + 2}"]))
                a.add(Inst(f"v_permlane16_swap_b32 v{pk + 1}, v{pk + 3}", "perm", [f"v{pk + 1}", f"v{pk + 3}"], [f"v{pk + 1}", f"v{pk + 3}"]))
                d = rr("v", pk, 4)
                a.add(Inst(f"buffer_store_dwordx4 {d}, v6, s[12:15], {so} offen offset:{64 * dp}", "store",
                           [d, "v6", "s[12:15]", so], []))
        a.label("L_done")
        a.other("s_endpgm")
        for k, cur in self.tramps:
            a.label(f"L_tramp_{k}")
            a.other(f"s_call_b64 s[40:41], L_slow_{cur}", [], ["s40", "s41"])
            a.other(f"s_branch L_back_{k}")
        self.slow(0)
        self.slow(1)
        n = a.pad_hazards(verbose="-v" in sys.argv)
        print("main: hazard pads inserted:", n, file=sys.stderr)
        return a.text()


HEADER = f"""; Kernarg layout for this problem (80 bytes, ptrs only, base s[0:1]):
; @launch kernel={PREP} grid=(2048,1,1) block=(256,1,1) lds=0
; @launch kernel={MAIN} grid=(256,1,1) block=(256,1,1) lds=147456
.amdgcn_target "amdgcn-amd-amdhsa--gfx950"
.text
"""


def kd(name, vgpr, sgpr, accum):
    return f""".amdhsa_kernel {name}
  .amdhsa_next_free_vgpr {vgpr}
  .amdhsa_next_free_sgpr {sgpr}
  .amdhsa_accum_offset {accum}
  .amdhsa_group_segment_fixed_size 0
  .amdhsa_kernarg_size 80
  .amdhsa_user_sgpr_count 2
  .amdhsa_user_sgpr_kernarg_segment_ptr 1
  .amdhsa_system_sgpr_workgroup_id_x 1
  .amdhsa_float_denorm_mode_32 3
  .amdhsa_float_denorm_mode_16_64 3
.end_amdhsa_kernel
"""


def main():
    out = HEADER
    out += f".globl {MAIN}\n.p2align 8\n.type {MAIN},@function\n"
    out += Main().gen()
    out += f".globl {PREP}\n.p2align 8\n.type {PREP},@function\n"
    out += gen_prep()
    out += '.section .rodata,"a"\n.p2align 6\n'
    out += kd(MAIN, 512, 48, 256)
    out += ".p2align 6\n"
    out += kd(PREP, 48, 48, 48)
    path = sys.argv[1] if len(sys.argv) > 1 and not sys.argv[1].startswith("-") else f"cdna_kernels/{NAME}.s"
    open(path, "w").write(out)
    print("wrote", path, len(out), "bytes", file=sys.stderr)


if __name__ == "__main__":
    main()
```

```python
import math
import struct
import sys

from asmlib import Asm, Inst, rr

NAME = "standalone__kv_cache_quant_int4_int2_kv_with_per_channel_or_per_token_scales__prompt"
MAIN = NAME + "_kernel"


def f32bits(x):
    return struct.unpack("<I", struct.pack("<f", x))[0]


CSCALE = (128.0 ** -0.5) * math.log2(math.e)
THR = 65536.0

VWS = 4 << 20
WS_BYTES = 8 << 20
R = 8
LDS_K01 = 131072
LDS_MSG = 147456
LDS_BYTES = 147456 + 256
POLL_LIMIT = 40000

STAMPS = "--stamps" in sys.argv
STAMP_REGS = [92, 94, 96, 98, 100, 44, 46, 48, 50, 52, 54, 56]


def S(buf, tb, qb):
    return 16 + buf * 32 + tb * 16 + qb * 4


def P(buf, qb):
    return 80 + buf * 16 + qb * 4


def NEGM(qb):
    return 112 + qb * 4


def TMP(pair):
    return 128 + 2 * (pair % 4)


def PS(buf, qb):
    return 136 + buf * 4 + qb


def L(qb):
    return 144 + qb


CHK = 148


def O(db, qb):
    return (db * 4 + qb) * 4


def Q(qb, ks):
    return 128 + (qb * 4 + ks) * 4


def RING(F):
    return 192 + 4 * (F % R)


class Main:
    def __init__(self):
        self.a = Asm()
        self.reads = []
        self.nslow = 0
        self.tramps = []
        self.vm = []

    def stamp(self, k, real=False):
        if STAMPS:
            r = STAMP_REGS[k]
            op = "s_memrealtime" if real else "s_memtime"
            self.a.salu(f"{op} s[{r}:{r + 1}]", [], [f"s{r}", f"s{r + 1}"])

    def dump_stamps(self, n):
        if not STAMPS:
            return
        a = self.a
        a.other("s_waitcnt vmcnt(0) lgkmcnt(0)")
        self.stamp(n - 2)
        self.stamp(n - 1, True)
        a.other("s_waitcnt lgkmcnt(0)")
        a.salu("s_mov_b32 s10, 0x10000000", [], ["s10"])
        a.salu("s_lshl_b32 s3, s2, 2", ["s2"], ["s3"])
        a.salu("s_add_u32 s3, s3, s16", ["s3", "s16"], ["s3"])
        a.salu("s_lshl_b32 s3, s3, 6", ["s3"], ["s3"])
        a.salu("s_add_u32 s3, s3, 0x1000000", ["s3"], ["s3"])
        a.valu("v_mov_b32 v1, s3", ["s3"], ["v1"])
        for k in range(n):
            a.valu(f"v_mov_b32 v2, s{STAMP_REGS[k]}", [f"s{STAMP_REGS[k]}"], ["v2"])
            a.add(Inst(f"buffer_store_dword v2, v1, s[8:11], 0 offen offset:{4 * k}", "store", ["v2", "v1"], []))
            a.nop(2)

    def mfma(self, D, A, B, C):
        srcc = [] if C == "0" else [C]
        self.a.add(Inst(f"v_mfma_f32_16x16x32_bf16 {D}, {A}, {B}, {C}", "mfma", [A, B], [D], srcc=srcc, passes=4))

    def vmem(self, text, rd, wr, tag=None, store=False):
        self.a.add(Inst(text, "store" if store else "vmem", rd, wr))
        self.vm.append(tag)

    def wait_vm(self, tag):
        idx = len(self.vm) - 1 - self.vm[::-1].index(tag)
        n = len(self.vm) - 1 - idx
        self.a.other(f"s_waitcnt vmcnt({n})")

    def ds_read_frag(self, F):
        slot = (F // 32) % 4
        n = F % 32
        off = slot * 32768 + n * 1024
        base = "v1" if off < 65536 else "v2"
        off %= 65536
        d = rr("a", RING(F), 4)
        self.a.add(Inst(f"ds_read_b128 {d}, {base} offset:{off}", "ds", [base], [d]))
        self.reads.append(F)

    def wait_frag(self, F):
        idx = self.reads.index(F)
        n = len(self.reads) - 1 - idx
        self.a.other(f"s_waitcnt lgkmcnt({n})")

    def exp(self, dst, src):
        self.a.trans(f"v_exp_f32 v{dst}, v{src}", [f"v{src}"], [f"v{dst}"])

    def add(self, dst, x, y):
        self.a.valu(f"v_add_f32 v{dst}, v{x}, v{y}", [f"v{x}", f"v{y}"], [f"v{dst}"])

    def cvt(self, dst, x, y):
        self.a.valu(f"v_cvt_pk_bf16_f32 v{dst}, v{x}, v{y}", [f"v{x}", f"v{y}"], [f"v{dst}"])

    @staticmethod
    def pair_info(pi):
        return pi >> 3, (pi >> 1) & 3, pi & 1

    def sm_exp(self, buf, pi, which):
        tb, qb, hf = self.pair_info(pi)
        self.exp(TMP(pi) + which, S(buf, tb, qb) + 2 * hf + which)

    def sm_add_a(self, buf, pi):
        tb, qb, hf = self.pair_info(pi)
        if tb == 0 and hf == 0:
            return False
        self.add(PS(buf, qb), PS(buf, qb), TMP(pi))
        return True

    def sm_add_b(self, buf, pi):
        tb, qb, hf = self.pair_info(pi)
        if tb == 0 and hf == 0:
            self.add(PS(buf, qb), TMP(pi), TMP(pi) + 1)
        else:
            self.add(PS(buf, qb), PS(buf, qb), TMP(pi) + 1)

    def sm_cvt(self, buf, pi):
        tb, qb, hf = self.pair_info(pi)
        self.cvt(P(buf, qb) + 2 * tb + hf, TMP(pi), TMP(pi) + 1)

    def cycle(self, u, F0, has_qk=True, has_sm=True, has_next=True, extra=None):
        a = self.a
        cur = (u + 1) % 2
        nxt = u % 2
        extra = extra or {}
        lacc_q = [0, 1, 2, 3]
        chk = has_sm and "--nochk" not in sys.argv
        for g in range(16):
            F = F0 + g
            phaseA = g < 8
            do_mfma = phaseA or has_qk
            if g <= 14:
                pb, pi = cur, g + 1
                pvalid = has_sm
            else:
                pb, pi = nxt, 0
                pvalid = has_next
            qb_, qi = cur, g
            qvalid = has_sm
            for m in range(4):
                if do_mfma:
                    fr = rr("a", RING(F), 4)
                    if phaseA:
                        d = rr("a", O(g, m), 4)
                        self.mfma(d, fr, rr("v", P(nxt, m), 4), d)
                    else:
                        tb, ks = (g - 8) >> 2, (g - 8) & 3
                        d = rr("v", S(nxt, tb, m), 4)
                        c = rr("v", NEGM(m), 4) if ks == 0 else d
                        self.mfma(d, fr, rr("a", Q(m, ks), 4), c)
                for fn in extra.get((g, m), []):
                    fn()
                if m == 0:
                    Fn = F + R - 1
                    if self.frag_needed(Fn):
                        self.ds_read_frag(Fn)
                    if qvalid:
                        self.sm_add_b(qb_, qi)
                elif m == 1:
                    if pvalid:
                        self.sm_exp(pb, pi, 0)
                    if g == 0 and lacc_q:
                        q = lacc_q.pop(0)
                        self.add(L(q), L(q), PS(nxt, q))
                    if g == 14 and chk:
                        a.valu(f"v_max3_f32 v{CHK}, v{PS(cur, 0)}, v{PS(cur, 1)}, v{PS(cur, 2)}",
                               [f"v{PS(cur, 0)}", f"v{PS(cur, 1)}", f"v{PS(cur, 2)}"], [f"v{CHK}"])
                    if g == 15 and chk:
                        a.valu(f"v_max_f32 v{CHK}, v{CHK}, v{PS(cur, 3)}", [f"v{CHK}", f"v{PS(cur, 3)}"], [f"v{CHK}"])
                elif m == 2:
                    if qvalid:
                        self.sm_cvt(qb_, qi)
                    did = self.sm_add_a(pb, pi) if pvalid else False
                    if not did:
                        if g == 15:
                            if chk:
                                a.valu(f"v_cmp_lt_f32 vcc, s18, v{CHK}", ["s18", f"v{CHK}"], ["vcc"])
                        elif lacc_q:
                            q = lacc_q.pop(0)
                            self.add(L(q), L(q), PS(nxt, q))
                else:
                    Fw = F + 1
                    if Fw in self.reads and self.frag_needed(Fw):
                        self.wait_frag(Fw)
                    if pvalid:
                        self.sm_exp(pb, pi, 1)
                    if g == 15 and chk:
                        k = self.nslow
                        self.nslow += 1
                        a.other(f"s_cbranch_vccnz L_tramp_{k}", ["vcc"])
                        a.label(f"L_back_{k}")
                        self.tramps.append((k, cur))
        assert not lacc_q

    def frag_needed(self, F):
        if F >= 32 * 32:
            return False
        if F // 32 == 31 and ((F % 32) >> 3) in (1, 3):
            return False
        return True

    def dma_piece(self, so, k):
        self.a.add(Inst(f"buffer_load_dwordx4 v1, s[8:11], {so} offen offset:{1024 * (k & 3)} sc1 lds", "vmem",
                        ["v1", "s[8:11]", so, "m0"], []))

    def iteration(self, i, dma=True, vm=8, barrier=True):
        a = self.a
        ex0 = {}
        ex1 = {}
        if "--nodma" in sys.argv:
            dma = False
            vm = 0
        if "--nobar" in sys.argv:
            barrier = False
        if barrier:
            def bar():
                a.other(f"s_waitcnt vmcnt({vm})")
                a.other("s_barrier")
            ex1[(4, 2)] = [bar]
        if dma:
            dslot = (i + 3) % 4
            for k in range(8):
                g = 5 + k
                fns = []
                if k == 0:
                    fns.append(lambda: a.salu(f"s_add_u32 m0, s20, {dslot * 32768}", ["s20"], ["m0", "scc"]))
                if k == 4:
                    fns.append(lambda: a.salu(f"s_add_u32 m0, s20, {dslot * 32768 + 4096}", ["s20"], ["m0", "scc"]))
                ex1.setdefault((g, 0), []).extend(fns)
                so = "s19" if k < 4 else "s21"
                ex1.setdefault((g, 1), []).append(lambda so=so, k=k: self.dma_piece(so, k))

            def adv():
                a.salu("s_add_u32 s19, s19, 16384", ["s19"], ["s19", "scc"])
                a.salu("s_add_u32 s21, s21, 16384", ["s21"], ["s21", "scc"])
            ex1.setdefault((14, 0), []).append(adv)
        u0 = 2 * i
        last = i == 31
        self.cycle(u0, 32 * i, has_qk=not last, has_sm=True, has_next=not last, extra=ex0)
        self.cycle(u0 + 1, 32 * i + 16, has_qk=not last, has_sm=not last, has_next=not last, extra=ex1)

    def dma_slot(self, sl):
        a = self.a
        for hf in range(2):
            a.salu(f"s_add_u32 m0, s20, {sl * 32768 + hf * 4096}", ["s20"], ["m0", "scc"])
            a.nop(1)
            so = "s19" if hf == 0 else "s21"
            for k in range(4):
                self.dma_piece(so, k)
        a.salu("s_add_u32 s19, s19, 16384", ["s19"], ["s19", "scc"])
        a.salu("s_add_u32 s21, s21, 16384", ["s21"], ["s21", "scc"])

    def rowmax(self, buf, qb, dst, t):
        a = self.a
        s0, s1 = S(buf, 0, qb), S(buf, 1, qb)
        a.valu(f"v_max3_f32 v{dst}, v{s0}, v{s0 + 1}, v{s0 + 2}", [f"v{s0}", f"v{s0 + 1}", f"v{s0 + 2}"], [f"v{dst}"])
        a.valu(f"v_max3_f32 v{dst}, v{dst}, v{s0 + 3}, v{s1}", [f"v{dst}", f"v{s0 + 3}", f"v{s1}"], [f"v{dst}"])
        a.valu(f"v_max3_f32 v{dst}, v{dst}, v{s1 + 1}, v{s1 + 2}", [f"v{dst}", f"v{s1 + 1}", f"v{s1 + 2}"], [f"v{dst}"])
        a.valu(f"v_max_f32 v{dst}, v{dst}, v{s1 + 3}", [f"v{dst}", f"v{s1 + 3}"], [f"v{dst}"])
        self.xlane(dst, t, "v_max_f32")

    def xlane(self, dst, t, op):
        a = self.a
        for sw in ("v_permlane16_swap_b32", "v_permlane32_swap_b32"):
            a.valu(f"v_mov_b32 v{t}, v{dst}", [f"v{dst}"], [f"v{t}"])
            a.add(Inst(f"{sw} v{dst}, v{t}", "perm", [f"v{dst}", f"v{t}"], [f"v{dst}", f"v{t}"]))
            a.valu(f"{op} v{dst}, v{dst}, v{t}", [f"v{dst}", f"v{t}"], [f"v{dst}"])

    def slow(self, cur):
        a = self.a
        nxt = 1 - cur
        a.label(f"L_slow_{cur}")
        a.nop(16)
        DL, FF, T0 = 150, 154, 158
        for qb in range(4):
            self.rowmax(cur, qb, DL + qb, T0)
            a.valu(f"v_ceil_f32 v{DL + qb}, v{DL + qb}", [f"v{DL + qb}"], [f"v{DL + qb}"])
            a.valu(f"v_max_f32 v{DL + qb}, 0, v{DL + qb}", [f"v{DL + qb}"], [f"v{DL + qb}"])
            a.trans(f"v_exp_f32 v{FF + qb}, -v{DL + qb}", [f"v{DL + qb}"], [f"v{FF + qb}"])
        for qb in range(4):
            d, f = DL + qb, FF + qb
            for r in range(4):
                x = NEGM(qb) + r
                a.valu(f"v_sub_f32 v{x}, v{x}, v{d}", [f"v{x}", f"v{d}"], [f"v{x}"])
            for b in (cur, nxt):
                for tb in range(2):
                    for r in range(4):
                        x = S(b, tb, qb) + r
                        a.valu(f"v_sub_f32 v{x}, v{x}, v{d}", [f"v{x}", f"v{d}"], [f"v{x}"])
            a.valu(f"v_mul_f32 v{L(qb)}, v{L(qb)}, v{f}", [f"v{L(qb)}", f"v{f}"], [f"v{L(qb)}"])
            for db in range(8):
                for r in range(4):
                    x = O(db, qb) + r
                    t = 160 + ((db * 4 + r) % 8)
                    a.valu(f"v_accvgpr_read_b32 v{t}, a{x}", [f"a{x}"], [f"v{t}"])
                    a.valu(f"v_mul_f32 v{t}, v{t}, v{f}", [f"v{t}", f"v{f}"], [f"v{t}"])
                    a.valu(f"v_accvgpr_write_b32 a{x}, v{t}", [f"v{t}"], [f"a{x}"])
        for pi in range(16):
            self.sm_exp(cur, pi, 0)
            self.sm_exp(cur, pi, 1)
            self.sm_add_a(cur, pi)
            self.sm_add_b(cur, pi)
            self.sm_cvt(cur, pi)
        self.sm_exp(nxt, 0, 0)
        self.sm_exp(nxt, 0, 1)
        a.nop(4)
        a.other("s_setpc_b64 s[86:87]", ["s86", "s87"])

    def dequant(self):
        a = self.a
        a.label("L_deq")
        self.vm = []
        KX, VX = 16, 48
        KSP, KZP, VSP, VZP = 80, 84, 88, 92
        KS, KZ, VS, VZ = 96, 104, 112, 120
        T = 128
        OUT = 144
        a.salu("s_lshl_b32 s75, s72, 11", ["s72"], ["s75"])
        a.salu("s_lshl_b32 s76, s74, 6", ["s74"], ["s76"])
        a.salu("s_add_u32 s75, s75, s76", ["s75", "s76"], ["s75"])
        a.salu("s_lshl_b32 s76, s72, 5", ["s72"], ["s76"])
        a.salu("s_add_u32 s76, s76, s74", ["s76", "s74"], ["s76"])
        a.salu("s_lshl_b32 s76, s76, 8", ["s76"], ["s76"])
        a.salu("s_lshl_b32 s77, s16, 6", ["s16"], ["s77"])
        a.salu("s_add_u32 s76, s76, s77", ["s76", "s77"], ["s76"])
        self.vmem(f"buffer_load_dwordx4 v[{KSP}:{KSP + 3}], v8, s[52:55], s76 offen", ["v8", "s[52:55]", "s76"], [f"v[{KSP}:{KSP + 3}]"], "ksc")
        self.vmem(f"buffer_load_dwordx4 v[{KZP}:{KZP + 3}], v8, s[56:59], s76 offen", ["v8", "s[56:59]", "s76"], [f"v[{KZP}:{KZP + 3}]"], "ksc")
        a.salu("s_lshr_b32 s77, s16, 1", ["s16"], ["s77"])
        a.salu("s_lshl_b32 s78, s77, 5", ["s77"], ["s78"])
        a.salu("s_add_u32 s78, s78, s75", ["s78", "s75"], ["s78"])
        a.salu("s_lshl_b32 s76, s78, 1", ["s78"], ["s76"])
        for (p, srd) in ((VSP, "s[60:63]"), (VZP, "s[64:67]")):
            for hh in range(2):
                self.vmem(f"buffer_load_dwordx2 v[{p + 2 * hh}:{p + 2 * hh + 1}], v9, {srd}, s76 offen offset:{32 * hh}",
                          ["v9", srd, "s76"], [f"v[{p + 2 * hh}:{p + 2 * hh + 1}]"], "vsc")
        a.salu("s_lshl_b32 s79, s75, 9", ["s75"], ["s79"])
        a.salu("s_lshl_b32 s80, s16, 7", ["s16"], ["s80"])
        a.salu("s_add_u32 s79, s79, s80", ["s79", "s80"], ["s79"])
        for e in range(4):
            for hh in range(2):
                d = f"v[{KX + 8 * e + 4 * hh}:{KX + 8 * e + 4 * hh + 3}]"
                self.vmem(f"buffer_load_dwordx4 {d}, v6, s[44:47], s79 offen offset:{16 * hh}", ["v6", "s[44:47]", "s79"], [d], f"k{e}")
            if e < 3:
                a.salu("s_add_u32 s79, s79, 8192", ["s79"], ["s79"])
        a.salu("s_lshl_b32 s79, s78, 9", ["s78"], ["s79"])
        a.salu("s_and_b32 s80, s16, 1", ["s16"], ["s80"])
        a.salu("s_lshl_b32 s81, s80, 8", ["s80"], ["s81"])
        a.salu("s_add_u32 s79, s79, s81", ["s79", "s81"], ["s79"])
        for j in range(8):
            if j == 4:
                a.salu("s_add_u32 s79, s79, 8192", ["s79"], ["s79"])
            d = f"v[{VX + 4 * j}:{VX + 4 * j + 3}]"
            self.vmem(f"buffer_load_dwordx4 {d}, v7, s[48:51], s79 offen offset:{512 * (j & 3)}", ["v7", "s[48:51]", "s79"], [d], "v")
        a.salu("s_lshl_b32 s79, s72, 19", ["s72"], ["s79"])
        a.salu("s_lshl_b32 s81, s74, 14", ["s74"], ["s81"])
        a.salu("s_add_u32 s79, s79, s81", ["s79", "s81"], ["s79"])
        a.salu("s_lshl_b32 s81, s77, 13", ["s77"], ["s81"])
        a.salu("s_lshl_b32 s82, s80, 12", ["s80"], ["s82"])
        a.salu("s_add_u32 s81, s81, s82", ["s81", "s82"], ["s81"])
        a.salu("s_add_u32 s81, s81, s79", ["s81", "s79"], ["s81"])
        a.salu(f"s_add_u32 s81, s81, {VWS}", ["s81"], ["s81"])
        a.salu("s_lshl_b32 s82, s16, 10", ["s16"], ["s82"])
        a.salu("s_add_u32 s79, s79, s82", ["s79", "s82"], ["s79"])

        def unpack(src, dst):
            for k in range(4):
                a.valu(f"v_lshlrev_b32 v{dst + 2 * k}, 16, v{src + k}", [f"v{src + k}"], [f"v{dst + 2 * k}"])
                a.valu(f"v_and_b32 v{dst + 2 * k + 1}, 0xffff0000, v{src + k}", [f"v{src + k}"], [f"v{dst + 2 * k + 1}"])

        def rnd(x0, n):
            for k in range(n // 2):
                self.cvt(T + k, x0 + 2 * k, x0 + 2 * k + 1)
            for k in range(n // 2):
                a.valu(f"v_lshlrev_b32 v{x0 + 2 * k}, 16, v{T + k}", [f"v{T + k}"], [f"v{x0 + 2 * k}"])
                a.valu(f"v_and_b32 v{x0 + 2 * k + 1}, 0xffff0000, v{T + k}", [f"v{T + k}"], [f"v{x0 + 2 * k + 1}"])

        def pk(op, x, y, bcast, neg=False):
            mods = ""
            if bcast:
                ye = y & ~1
                sel = y & 1
                mods += f" op_sel:[0,{sel}] op_sel_hi:[1,{sel}]"
                ys = f"v[{ye}:{ye + 1}]"
            else:
                ys = f"v[{y}:{y + 1}]"
            if neg:
                mods += " neg_lo:[0,1] neg_hi:[0,1]"
            a.valu(f"{op} v[{x}:{x + 1}], v[{x}:{x + 1}], {ys}{mods}", [f"v[{x}:{x + 1}]", ys], [f"v[{x}:{x + 1}]"])

        self.wait_vm("vsc")
        unpack(KSP, KS)
        unpack(KZP, KZ)
        unpack(VSP, VS)
        unpack(VZP, VZ)
        a.valu(f"v_mov_b32 v{T + 14}, 0x{f32bits(CSCALE):08x}", [], [f"v{T + 14}"])
        a.valu(f"v_mov_b32 v{T + 15}, 0x{f32bits(CSCALE):08x}", [], [f"v{T + 15}"])
        for e in range(4):
            x0 = KX + 8 * e
            self.wait_vm(f"k{e}")
            for k in range(8):
                a.valu(f"v_cvt_f32_i32 v{x0 + k}, v{x0 + k}", [f"v{x0 + k}"], [f"v{x0 + k}"])
            rnd(x0, 8)
            for k in range(4):
                pk("v_pk_add_f32", x0 + 2 * k, KZ + 2 * k, False, neg=True)
            rnd(x0, 8)
            for k in range(4):
                pk("v_pk_mul_f32", x0 + 2 * k, KS + 2 * k, False)
            rnd(x0, 8)
            for k in range(4):
                pk("v_pk_mul_f32", x0 + 2 * k, T + 14, False)
            o = OUT + 4 * e
            for k in range(4):
                self.cvt(o + k, x0 + 2 * k, x0 + 2 * k + 1)
            self.vmem(f"buffer_store_dwordx4 v[{o}:{o + 3}], v1, s[8:11], s79 offen sc1", [f"v[{o}:{o + 3}]", "v1", "s[8:11]", "s79"], [], "st", store=True)
            if e < 3:
                a.salu("s_add_u32 s79, s79, 4096", ["s79"], ["s79"])
        self.wait_vm("v")
        for j2 in range(4):
            x0 = VX + 8 * j2
            for k in range(8):
                a.valu(f"v_cvt_f32_i32 v{x0 + k}, v{x0 + k}", [f"v{x0 + k}"], [f"v{x0 + k}"])
            rnd(x0, 8)
            for k in range(4):
                pk("v_pk_add_f32", x0 + 2 * k, VZ + 2 * j2 + (k >> 1), True, neg=True)
            rnd(x0, 8)
            for k in range(4):
                pk("v_pk_mul_f32", x0 + 2 * k, VS + 2 * j2 + (k >> 1), True)
        for c in range(4):
            o = OUT + 16 + 4 * c
            for k in range(4):
                self.cvt(o + k, VX + 4 * (2 * k) + c, VX + 4 * (2 * k + 1) + c)
            self.vmem(f"buffer_store_dwordx4 v[{o}:{o + 3}], v1, s[8:11], s81 offen offset:{1024 * c} sc1",
                      [f"v[{o}:{o + 3}]", "v1", "s[8:11]", "s81"], [], "st", store=True)
        a.other("s_setpc_b64 s[84:85]", ["s84", "s85"])

    def gen(self):
        a = self.a
        a.label(MAIN)
        a.salu("s_cmp_ge_u32 s2, 256", ["s2"], ["scc"])
        a.other("s_cbranch_scc1 L_done")
        self.stamp(0)
        self.stamp(1, True)
        a.salu("s_load_dwordx16 s[24:39], s[0:1], 0", [], ["s[24:39]"])
        a.salu("s_load_dwordx4 s[40:43], s[0:1], 64", [], ["s[40:43]"])
        a.valu("v_lshrrev_b32 v3, 6, v0", ["v0"], ["v3"])
        a.valu("v_and_b32 v0, 63, v0", ["v0"], ["v0"])
        a.valu("v_readfirstlane_b32 s16, v3", ["v3"], ["s16"])
        a.valu("v_lshlrev_b32 v1, 4, v0", ["v0"], ["v1"])
        a.valu("v_add_u32 v2, 0x10000, v1", ["v1"], ["v2"])
        a.valu(f"v_add_u32 v3, {LDS_K01}, v1", ["v1"], ["v3"])
        a.valu("v_and_b32 v4, 15, v0", ["v0"], ["v4"])
        a.valu("v_lshrrev_b32 v5, 4, v0", ["v0"], ["v5"])
        a.valu("v_lshlrev_b32 v6, 9, v4", ["v4"], ["v6"])
        a.valu("v_lshl_add_u32 v6, v5, 5, v6", ["v5", "v6"], ["v6"])
        a.valu("v_and_b32 v7, 2, v4", ["v4"], ["v7"])
        a.valu("v_lshlrev_b32 v7, 2, v7", ["v7"], ["v7"])
        a.valu("v_lshrrev_b32 v8, 2, v4", ["v4"], ["v8"])
        a.valu("v_lshl_add_u32 v7, v8, 1, v7", ["v8", "v7"], ["v7"])
        a.valu("v_and_b32 v8, 1, v4", ["v4"], ["v8"])
        a.valu("v_add_u32 v7, v7, v8", ["v7", "v8"], ["v7"])
        a.valu("v_lshlrev_b32 v7, 4, v7", ["v7"], ["v7"])
        a.valu("v_lshl_add_u32 v7, v5, 11, v7", ["v5", "v7"], ["v7"])
        a.valu("v_lshlrev_b32 v8, 4, v5", ["v5"], ["v8"])
        a.valu("v_lshlrev_b32 v9, 3, v5", ["v5"], ["v9"])
        a.valu("v_lshlrev_b32 v10, 8, v4", ["v4"], ["v10"])
        a.valu("v_lshl_add_u32 v10, v5, 4, v10", ["v5", "v10"], ["v10"])
        a.salu("s_and_b32 s72, s2, 7", ["s2"], ["s72"])
        a.salu("s_lshr_b32 s73, s2, 3", ["s2"], ["s73"])
        a.salu("s_and_b32 s75, s73, 3", ["s73"], ["s75"])
        a.salu("s_lshl_b32 s88, s72, 2", ["s72"], ["s88"])
        a.salu("s_add_u32 s88, s88, s75", ["s88", "s75"], ["s88"])
        a.salu("s_lshr_b32 s75, s73, 2", ["s73"], ["s75"])
        a.salu("s_lshl_b32 s88, s88, 19", ["s88"], ["s88"])
        a.salu("s_lshl_b32 s75, s75, 16", ["s75"], ["s75"])
        a.salu("s_add_u32 s83, s88, s75", ["s88", "s75"], ["s83"])
        a.salu("s_lshl_b32 s75, s16, 14", ["s16"], ["s75"])
        a.salu("s_add_u32 s88, s83, s75", ["s83", "s75"], ["s88"])
        a.salu("s_add_u32 s89, s88, 4096", ["s88"], ["s89"])
        a.salu("s_add_u32 s90, s88, 8192", ["s88"], ["s90"])
        a.salu("s_add_u32 s91, s88, 12288", ["s88"], ["s91"])
        a.salu(f"s_mov_b32 s18, 0x{f32bits(THR):08x}", [], ["s18"])
        a.salu("s_lshl_b32 s20, s16, 13", ["s16"], ["s20"])
        a.salu("s_lshl_b32 s23, s72, 19", ["s72"], ["s23"])
        a.salu("s_and_b32 s75, s16, 1", ["s16"], ["s75"])
        a.salu("s_lshr_b32 s76, s16, 1", ["s16"], ["s76"])
        a.salu("s_lshl_b32 s76, s76, 13", ["s76"], ["s76"])
        a.salu("s_add_u32 s19, s23, s76", ["s23", "s76"], ["s19"])
        a.salu("s_movk_i32 s22, 0x4000", [], ["s22"])
        a.salu("s_cmp_eq_u32 s75, 1", ["s75"], ["scc"])
        a.salu(f"s_cselect_b32 s76, s22, {VWS}", ["scc", "s22"], ["s76"])
        a.salu("s_add_u32 s19, s19, s76", ["s19", "s76"], ["s19"])
        a.salu("s_add_u32 s21, s19, 4096", ["s19"], ["s21"])
        a.salu("s_lshl_b32 s75, s16, 12", ["s16"], ["s75"])
        a.salu("s_add_u32 s23, s23, s75", ["s23", "s75"], ["s23"])
        a.salu(f"s_add_u32 s22, s75, {LDS_K01}", ["s75"], ["s22"])
        a.salu("s_mov_b32 s74, s73", ["s73"], ["s74"])
        a.other("s_waitcnt lgkmcnt(0)")
        for base, lo, nb in ((4, 24, 16777216), (8, 42, WS_BYTES), (12, 38, 16777216), (44, 26, 8388608), (48, 28, 8388608),
                             (52, 30, 65536), (56, 32, 65536), (60, 34, 32768), (64, 36, 32768), (68, 40, 256)):
            a.salu(f"s_mov_b32 s{base}, s{lo}", [], [f"s{base}"])
            a.salu(f"s_mov_b32 s{base + 1}, s{lo + 1}", [], [f"s{base + 1}"])
            a.salu(f"s_mov_b32 s{base + 2}, {nb}", [], [f"s{base + 2}"])
            a.salu(f"s_mov_b32 s{base + 3}, 0x00020000", [], [f"s{base + 3}"])
        a.other("s_call_b64 s[84:85], L_deq", [], ["s84", "s85"])
        a.nop(4)
        self.stamp(2)
        a.salu("s_cmp_lt_u32 s16, 2", ["s16"], ["scc"])
        a.other("s_cbranch_scc1 L_noq")
        a.salu("s_sub_u32 s75, s16, 2", ["s16"], ["s75"])
        a.salu("s_lshl_b32 s76, s75, 15", ["s75"], ["s76"])
        a.salu("s_add_u32 s77, s76, s83", ["s76", "s83"], ["s77"])
        a.salu("s_add_u32 s76, s76, 65536", ["s76"], ["s76"])
        for blk in range(8):
            for ks in range(4):
                a.salu(f"s_add_u32 m0, s76, {960 * ks}", ["s76"], ["m0", "scc"])
                a.nop(1)
                a.add(Inst(f"buffer_load_dwordx4 v10, s[4:7], s77 offen offset:{64 * ks} lds", "vmem",
                           ["v10", "s[4:7]", "s77", "m0"], []))
            a.salu("s_add_u32 s76, s76, 4096", ["s76"], ["s76"])
            a.salu("s_add_u32 s77, s77, 4096", ["s77"], ["s77"])
        a.other("s_waitcnt vmcnt(32)")
        a.other("s_branch L_stdone")
        a.label("L_noq")
        a.other("s_waitcnt vmcnt(0)")
        a.label("L_stdone")
        a.other("s_barrier")
        for r in range(128):
            a.valu(f"v_accvgpr_write_b32 a{r}, 0", [], [f"a{r}"])
        a.salu("s_cmp_lg_u32 s16, 0", ["s16"], ["scc"])
        a.other("s_cbranch_scc1 L_nopoll")
        a.salu("s_lshl_b32 s75, 1, s73", ["s73"], ["s75"])
        a.salu("s_lshl_b32 s76, s72, 2", ["s72"], ["s76"])
        a.valu("v_mov_b32 v11, s75", ["s75"], ["v11"])
        a.valu("v_mov_b32 v12, s76", ["s76"], ["v12"])
        a.salu("s_mov_b64 s[78:79], exec", [], ["s78", "s79"])
        a.salu("s_mov_b64 exec, 1", [], ["exec"])
        a.add(Inst("buffer_atomic_or v11, v12, s[68:71], 0 offen sc1", "store", ["v11", "v12", "s[68:71]"], []))
        a.salu("s_mov_b32 s77, 0", [], ["s77"])
        a.label("L_poll")
        a.add(Inst("buffer_load_dword v13, v12, s[68:71], 0 offen sc1", "vmem", ["v12", "s[68:71]"], ["v13"]))
        a.other("s_waitcnt vmcnt(0)")
        a.valu("v_readfirstlane_b32 s75, v13", ["v13"], ["s75"])
        a.nop(2)
        a.salu("s_cmp_eq_u32 s75, -1", ["s75"], ["scc"])
        a.other("s_cbranch_scc1 L_polled")
        a.other("s_sleep 1")
        a.salu("s_add_u32 s77, s77, 1", ["s77"], ["s77"])
        a.salu(f"s_cmp_lt_u32 s77, {POLL_LIMIT}", ["s77"], ["scc"])
        a.other("s_cbranch_scc1 L_poll")
        a.label("L_polled")
        a.valu(f"v_mov_b32 v12, {LDS_MSG}", [], ["v12"])
        a.add(Inst("ds_write_b32 v12, v13", "ds", ["v12", "v13"], []))
        a.salu("s_mov_b64 exec, s[78:79]", ["s78", "s79"], ["exec"])
        a.other("s_waitcnt lgkmcnt(0)")
        a.label("L_nopoll")
        a.other("s_barrier")
        a.valu(f"v_mov_b32 v12, {LDS_MSG}", [], ["v12"])
        a.add(Inst("ds_read_b32 v13, v12", "ds", ["v12"], ["v13"]))
        a.other("s_waitcnt lgkmcnt(0)")
        a.valu("v_readfirstlane_b32 s17, v13", ["v13"], ["s17"])
        a.nop(2)
        a.salu("s_cmp_eq_u32 s17, -1", ["s17"], ["scc"])
        a.other("s_cbranch_scc1 L_ready")
        a.label("L_fb")
        a.salu("s_not_b32 s75, s17", ["s17"], ["s75"])
        a.salu("s_ff1_i32_b32 s74, s75", ["s75"], ["s74"])
        a.salu("s_bitset1_b32 s17, s74", ["s17", "s74"], ["s17"])
        a.other("s_call_b64 s[84:85], L_deq", [], ["s84", "s85"])
        a.nop(4)
        a.salu("s_cmp_lg_u32 s17, -1", ["s17"], ["scc"])
        a.other("s_cbranch_scc1 L_fb")
        a.other("s_waitcnt vmcnt(0)")
        a.other("s_barrier")
        a.label("L_ready")
        self.stamp(3)
        for qb in range(4):
            a.valu(f"v_mov_b32 v{L(qb)}, 0", [], [f"v{L(qb)}"])
        a.salu("s_mov_b32 m0, s22", ["s22"], ["m0"])
        a.nop(1)
        for k in range(4):
            self.dma_piece("s23", k)
        self.dma_slot(0)
        self.dma_slot(1)
        a.other("s_waitcnt vmcnt(16)")
        a.other("s_barrier")
        self.stamp(4)
        a.salu("s_lshl_b32 s75, s16, 14", ["s16"], ["s75"])
        a.valu("v_add_u32 v11, s75, v2", ["s75", "v2"], ["v11"])
        for f in range(8):
            d = rr("a", 192 + 4 * f, 4)
            a.add(Inst(f"ds_read_b128 {d}, v3 offset:{1024 * f}", "ds", ["v3"], [d]))
        for qb in range(4):
            for ks in range(4):
                d = rr("a", Q(qb, ks), 4)
                a.add(Inst(f"ds_read_b128 {d}, v11 offset:{1024 * (qb * 4 + ks)}", "ds", ["v11"], [d]))
        a.other("s_waitcnt lgkmcnt(0)")
        for f in range(8, 16):
            d = rr("a", 192 + 4 * f, 4)
            a.add(Inst(f"ds_read_b128 {d}, v3 offset:{1024 * f}", "ds", ["v3"], [d]))
        for f in range(8):
            tb, ks = f >> 2, f & 3
            for qb in range(4):
                d = rr("v", S(0, tb, qb), 4)
                self.mfma(d, rr("a", 192 + 4 * f, 4), rr("a", Q(qb, ks), 4), "0" if ks == 0 else d)
        a.nop(8)
        for qb in range(4):
            self.rowmax(0, qb, 150 + qb, 158)
        for qb in range(4):
            for r in range(4):
                a.valu(f"v_sub_f32 v{NEGM(qb) + r}, 0, v{150 + qb}", [f"v{150 + qb}"], [f"v{NEGM(qb) + r}"])
            for tb in range(2):
                for r in range(4):
                    x = S(0, tb, qb) + r
                    a.valu(f"v_sub_f32 v{x}, v{x}, v{150 + qb}", [f"v{x}", f"v{150 + qb}"], [f"v{x}"])
        a.other("s_waitcnt lgkmcnt(0)")
        pi = 0
        for f in range(8):
            tb, ks = f >> 2, f & 3
            for qb in range(4):
                d = rr("v", S(1, tb, qb), 4)
                self.mfma(d, rr("a", 192 + 4 * (8 + f), 4), rr("a", Q(qb, ks), 4),
                          rr("v", NEGM(qb), 4) if ks == 0 else d)
                if qb % 2 == 0:
                    self.sm_exp(0, pi, 0)
                    self.sm_exp(0, pi, 1)
                else:
                    self.sm_add_a(0, pi)
                    self.sm_add_b(0, pi)
                    self.sm_cvt(0, pi)
                    pi += 1
        assert pi == 16
        a.other("s_waitcnt vmcnt(8)")
        a.other("s_barrier")
        for F in range(R - 1):
            self.ds_read_frag(F)
        self.dma_slot(2)
        self.sm_exp(1, 0, 0)
        self.sm_exp(1, 0, 1)
        self.wait_frag(0)
        self.stamp(5)
        if STAMPS:
            a.other("s_waitcnt lgkmcnt(0)")
        a.salu("s_mov_b32 s17, 0", [], ["s17"])
        a.raw(".p2align 6")
        a.label("L_loop")
        for i in range(4):
            self.iteration(i)
        a.salu("s_add_u32 s17, s17, 1", ["s17"], ["s17", "scc"])
        a.salu("s_cmp_lt_u32 s17, 7", ["s17"], ["scc"])
        a.other("s_cbranch_scc1 L_loop")
        self.reads = [F + 24 * 32 for F in self.reads]
        self.iteration(28, dma=True, vm=8)
        self.iteration(29, dma=False, vm=8)
        self.iteration(30, dma=False, vm=0)
        self.iteration(31, dma=False, barrier=False)
        self.stamp(6)
        for qb in range(4):
            self.xlane(L(qb), 158, "v_add_f32")
        for qb in range(4):
            a.trans(f"v_rcp_f32 v{150 + 2 * qb}, v{L(qb)}", [f"v{L(qb)}"], [f"v{150 + 2 * qb}"])
        a.nop(4)
        k = 0
        for half in range(2):
            for qb in range(4):
                so = ["s88", "s89", "s90", "s91"][qb]
                tb_ = 176 + (k % 3) * 24
                k += 1
                pkb = tb_ + 16
                for r in range(4):
                    for c in range(4):
                        t = tb_ + 4 * r + c
                        x = O(4 * half + c, qb) + r
                        a.valu(f"v_accvgpr_read_b32 v{t}, a{x}", [f"a{x}"], [f"v{t}"])
                il = 150 + 2 * qb
                for j in range(8):
                    t = tb_ + 2 * j
                    a.valu(f"v_pk_mul_f32 v[{t}:{t + 1}], v[{t}:{t + 1}], v[{il}:{il + 1}] op_sel:[0,0] op_sel_hi:[1,0]",
                           [f"v[{t}:{t + 1}]", f"v{il}"], [f"v[{t}:{t + 1}]"])
                for j in range(8):
                    self.cvt(pkb + j, tb_ + 2 * j, tb_ + 2 * j + 1)
                for hh in range(2):
                    d = rr("v", pkb + 4 * hh, 4)
                    a.add(Inst(f"buffer_store_dwordx4 {d}, v10, s[12:15], {so} offen offset:{128 * half + 64 * hh}", "store",
                               [d, "v10", "s[12:15]", so], []))
        self.stamp(7)
        self.dump_stamps(10)
        a.label("L_done")
        a.other("s_endpgm")
        for k, cur in self.tramps:
            a.label(f"L_tramp_{k}")
            a.other(f"s_call_b64 s[86:87], L_slow_{cur}", [], ["s86", "s87"])
            a.other(f"s_branch L_back_{k}")
        self.slow(0)
        self.slow(1)
        self.dequant()
        n = a.pad_hazards(verbose="-v" in sys.argv)
        print("main: hazard pads inserted:", n, file=sys.stderr)
        return a.text()


HEADER = f"""; Kernarg layout for this problem (80 bytes, ptrs only, base s[0:1]):
; @launch grid=(256,1,1) block=(256,1,1) lds={LDS_BYTES}
.amdgcn_target "amdgcn-amd-amdhsa--gfx950"
.text
"""


def kd(name, vgpr, sgpr, accum):
    return f""".amdhsa_kernel {name}
  .amdhsa_next_free_vgpr {vgpr}
  .amdhsa_next_free_sgpr {sgpr}
  .amdhsa_accum_offset {accum}
  .amdhsa_group_segment_fixed_size 0
  .amdhsa_kernarg_size 80
  .amdhsa_user_sgpr_count 2
  .amdhsa_user_sgpr_kernarg_segment_ptr 1
  .amdhsa_system_sgpr_workgroup_id_x 1
  .amdhsa_float_denorm_mode_32 3
  .amdhsa_float_denorm_mode_16_64 3
.end_amdhsa_kernel
"""


def main():
    out = HEADER
    out += f".globl {MAIN}\n.p2align 8\n.type {MAIN},@function\n"
    out += Main().gen()
    out += '.section .rodata,"a"\n.p2align 6\n'
    out += kd(MAIN, 512, 102, 256)
    path = sys.argv[1] if len(sys.argv) > 1 and not sys.argv[1].startswith("-") else f"cdna_kernels/{NAME}.s"
    open(path, "w").write(out)
    print("wrote", path, len(out), "bytes", file=sys.stderr)


if __name__ == "__main__":
    main()
```

```python
import math
import struct
import sys

from asmlib import Asm, Inst, rr

NAME = "standalone__kv_cache_quant_int4_int2_kv_with_per_channel_or_per_token_scales__prompt"
MAIN = NAME + "_kernel"


def f32bits(x):
    return struct.unpack("<I", struct.pack("<f", x))[0]


CSCALE = (128.0 ** -0.5) * math.log2(math.e)
THR = 65536.0

VWS = 4 << 20
WS_BYTES = 8 << 20
R = 8
LDS_K01 = 131072
LDS_MSG = 147456
LDS_BYTES = 147456 + 256
POLL_LIMIT = 1 if "--forcefb" in sys.argv else 20000

STAMPS = "--stamps" in sys.argv
SLEEP = int(sys.argv[sys.argv.index("--sleep") + 1]) if "--sleep" in sys.argv else 12
WSTORE = " sc1 nt" if "--wnt" in sys.argv else (" sc0 sc1" if "--w01" in sys.argv else (" sc0 sc1 nt" if "--w01nt" in sys.argv else " sc1"))
OSTORE = " nt" if "--ont" in sys.argv else (" sc0 sc1" if "--osc01" in sys.argv else (" sc1 nt" if "--osc1nt" in sys.argv else ("" if "--oplain" in sys.argv else " sc1")))
STAMP_REGS = [92, 94, 96, 98, 100, 24, 26, 28, 30, 32, 34, 36, 38, 40]


def S(buf, tb, qb):
    return 16 + buf * 32 + tb * 16 + qb * 4


def P(buf, qb):
    return 80 + buf * 16 + qb * 4


def NEGM(qb):
    return 112 + qb * 4


def TMP(pair):
    return 128 + 2 * (pair % 4)


def PS(buf, qb):
    return 136 + buf * 4 + qb


def L(qb):
    return 144 + qb


CHK = 148


def O(db, qb):
    return (db * 4 + qb) * 4


def Q(qb, ks):
    return 128 + (qb * 4 + ks) * 4


def RING(F):
    return 192 + 4 * (F % R)


class Main:
    def __init__(self):
        self.a = Asm()
        self.reads = []
        self.nslow = 0
        self.tramps = []
        self.vm = []

    def stamp(self, k, real=False):
        if STAMPS:
            r = STAMP_REGS[k]
            op = "s_memrealtime" if real else "s_memtime"
            self.a.salu(f"{op} s[{r}:{r + 1}]", [], [f"s{r}", f"s{r + 1}"])

    def dump_stamps(self, n):
        if not STAMPS:
            return
        a = self.a
        a.other("s_waitcnt vmcnt(0) lgkmcnt(0)")
        self.stamp(10)
        self.stamp(11, True)
        a.other("s_waitcnt lgkmcnt(0)")
        a.salu("s_mov_b32 s10, 0x10000000", [], ["s10"])
        a.salu("s_lshl_b32 s3, s2, 2", ["s2"], ["s3"])
        a.salu("s_add_u32 s3, s3, s16", ["s3", "s16"], ["s3"])
        a.salu("s_lshl_b32 s3, s3, 6", ["s3"], ["s3"])
        a.salu("s_add_u32 s3, s3, 0x1000000", ["s3"], ["s3"])
        a.valu("v_mov_b32 v1, s3", ["s3"], ["v1"])
        for k in range(n):
            a.valu(f"v_mov_b32 v2, s{STAMP_REGS[k]}", [f"s{STAMP_REGS[k]}"], ["v2"])
            a.add(Inst(f"buffer_store_dword v2, v1, s[8:11], 0 offen offset:{4 * k}", "store", ["v2", "v1"], []))
            a.nop(2)

    def mfma(self, D, A, B, C):
        srcc = [] if C == "0" else [C]
        self.a.add(Inst(f"v_mfma_f32_16x16x32_bf16 {D}, {A}, {B}, {C}", "mfma", [A, B], [D], srcc=srcc, passes=4))

    def vmem(self, text, rd, wr, tag=None, store=False):
        self.a.add(Inst(text, "store" if store else "vmem", rd, wr))
        self.vm.append(tag)

    def wait_vm(self, tag):
        idx = len(self.vm) - 1 - self.vm[::-1].index(tag)
        n = len(self.vm) - 1 - idx
        assert n <= 63
        self.a.other(f"s_waitcnt vmcnt({n})")

    def ds_read_frag(self, F):
        slot = (F // 32) % 4
        n = F % 32
        off = slot * 32768 + n * 1024
        base = "v1" if off < 65536 else "v2"
        off %= 65536
        d = rr("a", RING(F), 4)
        self.a.add(Inst(f"ds_read_b128 {d}, {base} offset:{off}", "ds", [base], [d]))
        self.reads.append(F)

    def wait_frag(self, F):
        idx = self.reads.index(F)
        n = len(self.reads) - 1 - idx
        self.a.other(f"s_waitcnt lgkmcnt({n})")

    def exp(self, dst, src):
        self.a.trans(f"v_exp_f32 v{dst}, v{src}", [f"v{src}"], [f"v{dst}"])

    def add(self, dst, x, y):
        self.a.valu(f"v_add_f32 v{dst}, v{x}, v{y}", [f"v{x}", f"v{y}"], [f"v{dst}"])

    def cvt(self, dst, x, y):
        self.a.valu(f"v_cvt_pk_bf16_f32 v{dst}, v{x}, v{y}", [f"v{x}", f"v{y}"], [f"v{dst}"])

    @staticmethod
    def pair_info(pi):
        return pi >> 3, (pi >> 1) & 3, pi & 1

    def sm_exp(self, buf, pi, which):
        tb, qb, hf = self.pair_info(pi)
        self.exp(TMP(pi) + which, S(buf, tb, qb) + 2 * hf + which)

    def sm_add_a(self, buf, pi):
        tb, qb, hf = self.pair_info(pi)
        if tb == 0 and hf == 0:
            return False
        self.add(PS(buf, qb), PS(buf, qb), TMP(pi))
        return True

    def sm_add_b(self, buf, pi):
        tb, qb, hf = self.pair_info(pi)
        if tb == 0 and hf == 0:
            self.add(PS(buf, qb), TMP(pi), TMP(pi) + 1)
        else:
            self.add(PS(buf, qb), PS(buf, qb), TMP(pi) + 1)

    def sm_cvt(self, buf, pi):
        tb, qb, hf = self.pair_info(pi)
        self.cvt(P(buf, qb) + 2 * tb + hf, TMP(pi), TMP(pi) + 1)

    def cycle(self, u, F0, has_qk=True, has_sm=True, has_next=True, extra=None):
        a = self.a
        cur = (u + 1) % 2
        nxt = u % 2
        extra = extra or {}
        lacc_q = [0, 1, 2, 3]
        chk = has_sm and "--nochk" not in sys.argv
        for g in range(16):
            F = F0 + g
            phaseA = g < 8
            do_mfma = phaseA or has_qk
            if g <= 14:
                pb, pi = cur, g + 1
                pvalid = has_sm
            else:
                pb, pi = nxt, 0
                pvalid = has_next
            qb_, qi = cur, g
            qvalid = has_sm
            for m in range(4):
                if do_mfma:
                    fr = rr("a", RING(F), 4)
                    if phaseA:
                        d = rr("a", O(g, m), 4)
                        self.mfma(d, fr, rr("v", P(nxt, m), 4), d)
                    else:
                        tb, ks = (g - 8) >> 2, (g - 8) & 3
                        d = rr("v", S(nxt, tb, m), 4)
                        c = rr("v", NEGM(m), 4) if ks == 0 else d
                        self.mfma(d, fr, rr("a", Q(m, ks), 4), c)
                for fn in extra.get((g, m), []):
                    fn()
                if m == 0:
                    Fn = F + R - 1
                    if self.frag_needed(Fn):
                        self.ds_read_frag(Fn)
                    if qvalid:
                        self.sm_add_b(qb_, qi)
                elif m == 1:
                    if pvalid:
                        self.sm_exp(pb, pi, 0)
                    if g == 0 and lacc_q:
                        q = lacc_q.pop(0)
                        self.add(L(q), L(q), PS(nxt, q))
                    if g == 14 and chk:
                        a.valu(f"v_max3_f32 v{CHK}, v{PS(cur, 0)}, v{PS(cur, 1)}, v{PS(cur, 2)}",
                               [f"v{PS(cur, 0)}", f"v{PS(cur, 1)}", f"v{PS(cur, 2)}"], [f"v{CHK}"])
                    if g == 15 and chk:
                        a.valu(f"v_max_f32 v{CHK}, v{CHK}, v{PS(cur, 3)}", [f"v{CHK}", f"v{PS(cur, 3)}"], [f"v{CHK}"])
                elif m == 2:
                    if qvalid:
                        self.sm_cvt(qb_, qi)
                    did = self.sm_add_a(pb, pi) if pvalid else False
                    if not did:
                        if g == 15:
                            if chk:
                                a.valu(f"v_cmp_lt_f32 vcc, s18, v{CHK}", ["s18", f"v{CHK}"], ["vcc"])
                        elif lacc_q:
                            q = lacc_q.pop(0)
                            self.add(L(q), L(q), PS(nxt, q))
                else:
                    Fw = F + 1
                    if Fw in self.reads and self.frag_needed(Fw):
                        self.wait_frag(Fw)
                    if pvalid:
                        self.sm_exp(pb, pi, 1)
                    if g == 15 and chk:
                        k = self.nslow
                        self.nslow += 1
                        a.other(f"s_cbranch_vccnz L_tramp_{k}", ["vcc"])
                        a.label(f"L_back_{k}")
                        self.tramps.append((k, cur))
        assert not lacc_q

    def frag_needed(self, F):
        if F >= 32 * 32:
            return False
        if F // 32 == 31 and ((F % 32) >> 3) in (1, 3):
            return False
        return True

    def dma_piece(self, so, k):
        self.a.add(Inst(f"buffer_load_dwordx4 v1, s[8:11], {so} offen offset:{1024 * (k & 3)} sc1 lds", "vmem",
                        ["v1", "s[8:11]", so, "m0"], []))

    def dma_addr(self):
        a = self.a
        a.salu("s_add_u32 s19, s23, s22", ["s23", "s22"], ["s19", "scc"])
        a.salu("s_add_u32 s21, s19, 4096", ["s19"], ["s21", "scc"])
        a.salu("s_add_u32 s22, s22, 16384", ["s22"], ["s22", "scc"])
        a.salu("s_and_b32 s22, s22, 0x7ffff", ["s22"], ["s22", "scc"])

    def flag_wait(self):
        a = self.a
        a.salu("s_cmp_lg_u32 s16, 0", ["s16"], ["scc"])
        a.other("s_cbranch_scc1 L_nopoll")
        a.salu("s_mov_b64 s[78:79], exec", [], ["s78", "s79"])
        a.salu("s_mov_b64 exec, 1", [], ["exec"])
        a.salu("s_mov_b32 s77, 0", [], ["s77"])
        a.label("L_poll")
        a.add(Inst("buffer_load_dword v13, v12, s[68:71], 0 offen sc1", "vmem", ["v12", "s[68:71]"], ["v13"]))
        a.other("s_waitcnt vmcnt(0)")
        a.valu("v_readfirstlane_b32 s75, v13", ["v13"], ["s75"])
        a.nop(2)
        a.salu("s_cmp_eq_u32 s75, -1", ["s75"], ["scc"])
        a.other("s_cbranch_scc1 L_polled")
        a.other(f"s_sleep {SLEEP}")
        a.salu("s_add_u32 s77, s77, 1", ["s77"], ["s77"])
        a.salu(f"s_cmp_lt_u32 s77, {POLL_LIMIT}", ["s77"], ["scc"])
        a.other("s_cbranch_scc1 L_poll")
        a.label("L_polled")
        a.add(Inst("ds_write_b32 v14, v13", "ds", ["v14", "v13"], []))
        a.salu("s_mov_b64 exec, s[78:79]", ["s78", "s79"], ["exec"])
        a.other("s_waitcnt lgkmcnt(0)")
        a.label("L_nopoll")
        a.other("s_barrier")
        a.add(Inst("ds_read_b32 v13, v14", "ds", ["v14"], ["v13"]))
        a.other("s_waitcnt lgkmcnt(0)")
        a.valu("v_readfirstlane_b32 s17, v13", ["v13"], ["s17"])
        a.nop(2)
        a.salu("s_cmp_lg_u32 s17, -1", ["s17"], ["scc"])
        a.other("s_cbranch_scc1 L_fb")
        a.label("L_ready")

    def iteration(self, i, dma=True, vm=8, barrier=True, first=False):
        a = self.a
        ex0 = {}
        ex1 = {}
        if "--nodma" in sys.argv and not first:
            dma = False
            vm = 0
        if "--nobar" in sys.argv and not first:
            barrier = False
        if first:
            ex1[(4, 2)] = [self.flag_wait]
        elif barrier:
            def bar():
                a.other(f"s_waitcnt vmcnt({vm})")
                a.other("s_barrier")
            ex1[(4, 2)] = [bar]
        if dma:
            slots = [2, 3] if first else [(i + 3) % 4]
            sites = [(g, m) for g in range(5, 13) for m in ((1, 3) if first else (1,))]
            n = 0
            for dslot in slots:
                for k in range(8):
                    g, m = sites[n]
                    n += 1
                    fns = []
                    if k == 0:
                        fns.append(self.dma_addr)
                        fns.append(lambda dslot=dslot: a.salu(f"s_add_u32 m0, s20, {dslot * 32768}", ["s20"], ["m0", "scc"]))
                    if k == 4:
                        fns.append(lambda dslot=dslot: a.salu(f"s_add_u32 m0, s20, {dslot * 32768 + 4096}", ["s20"], ["m0", "scc"]))
                    ex1.setdefault((g, m - 1), []).extend(fns)
                    so = "s19" if k < 4 else "s21"
                    ex1.setdefault((g, m), []).append(lambda so=so, k=k: self.dma_piece(so, k))
        u0 = 2 * i
        last = i == 31
        self.cycle(u0, 32 * i, has_qk=not last, has_sm=True, has_next=not last, extra=ex0)
        self.cycle(u0 + 1, 32 * i + 16, has_qk=not last, has_sm=not last, has_next=not last, extra=ex1)

    def rowmax(self, buf, qb, dst, t):
        a = self.a
        s0, s1 = S(buf, 0, qb), S(buf, 1, qb)
        a.valu(f"v_max3_f32 v{dst}, v{s0}, v{s0 + 1}, v{s0 + 2}", [f"v{s0}", f"v{s0 + 1}", f"v{s0 + 2}"], [f"v{dst}"])
        a.valu(f"v_max3_f32 v{dst}, v{dst}, v{s0 + 3}, v{s1}", [f"v{dst}", f"v{s0 + 3}", f"v{s1}"], [f"v{dst}"])
        a.valu(f"v_max3_f32 v{dst}, v{dst}, v{s1 + 1}, v{s1 + 2}", [f"v{dst}", f"v{s1 + 1}", f"v{s1 + 2}"], [f"v{dst}"])
        a.valu(f"v_max_f32 v{dst}, v{dst}, v{s1 + 3}", [f"v{dst}", f"v{s1 + 3}"], [f"v{dst}"])
        self.xlane(dst, t, "v_max_f32")

    def xlane(self, dst, t, op):
        a = self.a
        for sw in ("v_permlane16_swap_b32", "v_permlane32_swap_b32"):
            a.valu(f"v_mov_b32 v{t}, v{dst}", [f"v{dst}"], [f"v{t}"])
            a.add(Inst(f"{sw} v{dst}, v{t}", "perm", [f"v{dst}", f"v{t}"], [f"v{dst}", f"v{t}"]))
            a.valu(f"{op} v{dst}, v{dst}, v{t}", [f"v{dst}", f"v{t}"], [f"v{dst}"])

    def slow(self, cur):
        a = self.a
        nxt = 1 - cur
        a.label(f"L_slow_{cur}")
        a.nop(16)
        DL, FF, T0 = 150, 154, 158
        for qb in range(4):
            self.rowmax(cur, qb, DL + qb, T0)
            a.valu(f"v_ceil_f32 v{DL + qb}, v{DL + qb}", [f"v{DL + qb}"], [f"v{DL + qb}"])
            a.valu(f"v_max_f32 v{DL + qb}, 0, v{DL + qb}", [f"v{DL + qb}"], [f"v{DL + qb}"])
            a.trans(f"v_exp_f32 v{FF + qb}, -v{DL + qb}", [f"v{DL + qb}"], [f"v{FF + qb}"])
        for qb in range(4):
            d, f = DL + qb, FF + qb
            for r in range(4):
                x = NEGM(qb) + r
                a.valu(f"v_sub_f32 v{x}, v{x}, v{d}", [f"v{x}", f"v{d}"], [f"v{x}"])
            for b in (cur, nxt):
                for tb in range(2):
                    for r in range(4):
                        x = S(b, tb, qb) + r
                        a.valu(f"v_sub_f32 v{x}, v{x}, v{d}", [f"v{x}", f"v{d}"], [f"v{x}"])
            a.valu(f"v_mul_f32 v{L(qb)}, v{L(qb)}, v{f}", [f"v{L(qb)}", f"v{f}"], [f"v{L(qb)}"])
            for db in range(8):
                for r in range(4):
                    x = O(db, qb) + r
                    t = 160 + ((db * 4 + r) % 8)
                    a.valu(f"v_accvgpr_read_b32 v{t}, a{x}", [f"a{x}"], [f"v{t}"])
                    a.valu(f"v_mul_f32 v{t}, v{t}, v{f}", [f"v{t}", f"v{f}"], [f"v{t}"])
                    a.valu(f"v_accvgpr_write_b32 a{x}, v{t}", [f"v{t}"], [f"a{x}"])
        for pi in range(16):
            self.sm_exp(cur, pi, 0)
            self.sm_exp(cur, pi, 1)
            self.sm_add_a(cur, pi)
            self.sm_add_b(cur, pi)
            self.sm_cvt(cur, pi)
        self.sm_exp(nxt, 0, 0)
        self.sm_exp(nxt, 0, 1)
        a.nop(4)
        a.other("s_setpc_b64 s[86:87]", ["s86", "s87"])

    def unpack(self, src, dst):
        a = self.a
        for k in range(4):
            a.valu(f"v_lshlrev_b32 v{dst + 2 * k}, 16, v{src + k}", [f"v{src + k}"], [f"v{dst + 2 * k}"])
            a.valu(f"v_and_b32 v{dst + 2 * k + 1}, 0xffff0000, v{src + k}", [f"v{src + k}"], [f"v{dst + 2 * k + 1}"])

    def rnd(self, x0, T):
        a = self.a
        for k in range(4):
            self.cvt(T + k, x0 + 2 * k, x0 + 2 * k + 1)
        for k in range(4):
            a.valu(f"v_lshlrev_b32 v{x0 + 2 * k}, 16, v{T + k}", [f"v{T + k}"], [f"v{x0 + 2 * k}"])
            a.valu(f"v_and_b32 v{x0 + 2 * k + 1}, 0xffff0000, v{T + k}", [f"v{T + k}"], [f"v{x0 + 2 * k + 1}"])

    def pk(self, op, x, y, bcast, neg=False):
        mods = ""
        if bcast:
            ye = y & ~1
            sel = y & 1
            mods += f" op_sel:[0,{sel}] op_sel_hi:[1,{sel}]"
            ys = f"v[{ye}:{ye + 1}]"
        else:
            ys = f"v[{y}:{y + 1}]"
        if neg:
            mods += " neg_lo:[0,1] neg_hi:[0,1]"
        self.a.valu(f"{op} v[{x}:{x + 1}], v[{x}:{x + 1}], {ys}{mods}", [f"v[{x}:{x + 1}]", ys], [f"v[{x}:{x + 1}]"])

    def tile_sregs(self, tile_s):
        a = self.a
        a.salu("s_lshl_b32 s75, s72, 11", ["s72"], ["s75"])
        a.salu(f"s_lshl_b32 s76, {tile_s}, 6", [tile_s], ["s76"])
        a.salu("s_add_u32 s75, s75, s76", ["s75", "s76"], ["s75"])
        a.salu("s_lshl_b32 s76, s72, 5", ["s72"], ["s76"])
        a.salu(f"s_add_u32 s76, s76, {tile_s}", ["s76", tile_s], ["s76"])
        a.salu("s_lshl_b32 s76, s76, 8", ["s76"], ["s76"])
        a.salu("s_lshl_b32 s77, s16, 6", ["s16"], ["s77"])
        a.salu("s_add_u32 s76, s76, s77", ["s76", "s77"], ["s76"])
        a.salu("s_lshr_b32 s77, s16, 1", ["s16"], ["s77"])
        a.salu("s_lshl_b32 s77, s77, 5", ["s77"], ["s77"])
        a.salu("s_add_u32 s77, s77, s75", ["s77", "s75"], ["s77"])
        a.salu("s_lshl_b32 s79, s77, 9", ["s77"], ["s79"])
        a.salu("s_lshl_b32 s77, s77, 1", ["s77"], ["s77"])
        a.salu("s_and_b32 s78, s16, 1", ["s16"], ["s78"])
        a.salu("s_lshl_b32 s78, s78, 8", ["s78"], ["s78"])
        a.salu("s_add_u32 s79, s79, s78", ["s79", "s78"], ["s79"])
        a.salu("s_lshl_b32 s78, s75, 9", ["s75"], ["s78"])
        a.salu("s_lshl_b32 s80, s16, 7", ["s16"], ["s80"])
        a.salu("s_add_u32 s78, s78, s80", ["s78", "s80"], ["s78"])

    def load_k(self, KX, KP, tag, pol=" nt"):
        a = self.a
        self.vmem(f"buffer_load_dwordx4 v[{KP}:{KP + 3}], v8, s[52:55], s76 offen", ["v8", "s[52:55]", "s76"], [f"v[{KP}:{KP + 3}]"], tag + "s")
        self.vmem(f"buffer_load_dwordx4 v[{KP + 4}:{KP + 7}], v8, s[56:59], s76 offen", ["v8", "s[56:59]", "s76"], [f"v[{KP + 4}:{KP + 7}]"], tag + "s")
        for e in range(4):
            for hh in range(2):
                d = f"v[{KX + 8 * e + 4 * hh}:{KX + 8 * e + 4 * hh + 3}]"
                self.vmem(f"buffer_load_dwordx4 {d}, v6, s[44:47], s78 offen offset:{16 * hh}{pol}", ["v6", "s[44:47]", "s78"], [d], f"{tag}{e}")
            if e < 3:
                a.salu("s_add_u32 s78, s78, 8192", ["s78"], ["s78"])

    def load_v(self, VX, VP, tag, pol=" nt"):
        a = self.a
        for (p, srd) in ((VP, "s[60:63]"), (VP + 4, "s[64:67]")):
            for hh in range(2):
                self.vmem(f"buffer_load_dwordx2 v[{p + 2 * hh}:{p + 2 * hh + 1}], v9, {srd}, s77 offen offset:{32 * hh}",
                          ["v9", srd, "s77"], [f"v[{p + 2 * hh}:{p + 2 * hh + 1}]"], tag + "s")
        for j in range(8):
            if j == 4:
                a.salu("s_add_u32 s79, s79, 8192", ["s79"], ["s79"])
            d = f"v[{VX + 4 * j}:{VX + 4 * j + 3}]"
            self.vmem(f"buffer_load_dwordx4 {d}, v7, s[48:51], s79 offen offset:{512 * (j & 3)}{pol}", ["v7", "s[48:51]", "s79"], [d], tag)

    def proc_k(self, KX, KP, tag, SC, T, CS, outs, sink):
        a = self.a
        self.wait_vm(tag + "s")
        self.unpack(KP, SC)
        self.unpack(KP + 4, SC + 8)
        for e in range(4):
            x0 = KX + 8 * e
            self.wait_vm(f"{tag}{e}")
            for k in range(8):
                a.valu(f"v_cvt_f32_i32 v{x0 + k}, v{x0 + k}", [f"v{x0 + k}"], [f"v{x0 + k}"])
            self.rnd(x0, T)
            for k in range(4):
                self.pk("v_pk_add_f32", x0 + 2 * k, SC + 8 + 2 * k, False, neg=True)
            self.rnd(x0, T)
            for k in range(4):
                self.pk("v_pk_mul_f32", x0 + 2 * k, SC + 2 * k, False)
            self.rnd(x0, T)
            for k in range(4):
                self.pk("v_pk_mul_f32", x0 + 2 * k, CS, False)
            o = outs[self.outi % len(outs)]
            self.outi += 1
            for k in range(4):
                self.cvt(o + k, x0 + 2 * k, x0 + 2 * k + 1)
            sink(e, o)

    def proc_v(self, VX, VP, tag, SC, T, outs, sink):
        a = self.a
        self.wait_vm(tag + "s")
        self.unpack(VP, SC)
        self.unpack(VP + 4, SC + 8)
        self.wait_vm(tag)
        for j2 in range(4):
            x0 = VX + 8 * j2
            for k in range(8):
                a.valu(f"v_cvt_f32_i32 v{x0 + k}, v{x0 + k}", [f"v{x0 + k}"], [f"v{x0 + k}"])
            self.rnd(x0, T)
            for k in range(4):
                self.pk("v_pk_add_f32", x0 + 2 * k, SC + 8 + 2 * j2 + (k >> 1), True, neg=True)
            self.rnd(x0, T)
            for k in range(4):
                self.pk("v_pk_mul_f32", x0 + 2 * k, SC + 2 * j2 + (k >> 1), True)
        for c in range(4):
            o = outs[self.outi % len(outs)]
            self.outi += 1
            for k in range(4):
                self.cvt(o + k, VX + 4 * (2 * k) + c, VX + 4 * (2 * k + 1) + c)
            sink(c, o)

    def gdest(self, tile_s):
        a = self.a
        a.salu("s_lshl_b32 s81, s72, 19", ["s72"], ["s81"])
        a.salu(f"s_lshl_b32 s80, {tile_s}, 14", [tile_s], ["s80"])
        a.salu("s_add_u32 s81, s81, s80", ["s81", "s80"], ["s81"])
        a.salu("s_lshl_b32 s80, s16, 12", ["s16"], ["s80"])
        a.salu("s_add_u32 s82, s81, s80", ["s81", "s80"], ["s82"])
        a.salu(f"s_add_u32 s82, s82, {VWS}", ["s82"], ["s82"])
        a.salu("s_lshl_b32 s80, s16, 10", ["s16"], ["s80"])
        a.salu("s_add_u32 s81, s81, s80", ["s81", "s80"], ["s81"])

    def gstore_k(self, e, o):
        self.vmem(f"buffer_store_dwordx4 v[{o}:{o + 3}], v1, s[8:11], s81 offen{WSTORE}", [f"v[{o}:{o + 3}]", "v1", "s[8:11]", "s81"], [], "st", store=True)
        if e < 3:
            self.a.salu("s_add_u32 s81, s81, 4096", ["s81"], ["s81"])

    def gstore_v(self, c, o):
        self.vmem(f"buffer_store_dwordx4 v[{o}:{o + 3}], v1, s[8:11], s82 offen offset:{1024 * c}{WSTORE}",
                  [f"v[{o}:{o + 3}]", "v1", "s[8:11]", "s82"], [], "st", store=True)

    def lds_write(self, addr, off, o):
        self.a.add(Inst(f"ds_write_b128 {addr}, v[{o}:{o + 3}] offset:{off}", "store", [addr, f"v[{o}:{o + 3}]"], []))

    def fallback_deq(self):
        a = self.a
        a.label("L_deq")
        self.vm = []
        self.outi = 0
        X, PK_, SC, T, CS, OUTS = 168, 200, 208, 224, 228, [232, 236, 240, 244]
        a.valu(f"v_mov_b32 v{CS}, 0x{f32bits(CSCALE):08x}", [], [f"v{CS}"])
        a.valu(f"v_mov_b32 v{CS + 1}, 0x{f32bits(CSCALE):08x}", [], [f"v{CS + 1}"])
        self.tile_sregs("s74")
        self.gdest("s74")
        self.load_k(X, PK_, "k")
        self.proc_k(X, PK_, "k", SC, T, CS, OUTS, self.gstore_k)
        a.other("s_waitcnt vmcnt(0)")
        self.load_v(X, PK_, "v")
        self.proc_v(X, PK_, "v", SC, T, OUTS, self.gstore_v)
        a.other("s_waitcnt vmcnt(0)")
        a.other("s_setpc_b64 s[84:85]", ["s84", "s85"])

    def gen(self):
        a = self.a
        a.label(MAIN)
        a.salu("s_cmp_ge_u32 s2, 256", ["s2"], ["scc"])
        a.other("s_cbranch_scc1 L_done")
        self.stamp(0, True)
        a.salu("s_load_dwordx16 s[24:39], s[0:1], 0", [], ["s[24:39]"])
        a.salu("s_load_dwordx4 s[40:43], s[0:1], 64", [], ["s[40:43]"])
        a.valu("v_lshrrev_b32 v3, 6, v0", ["v0"], ["v3"])
        a.valu("v_and_b32 v0, 63, v0", ["v0"], ["v0"])
        a.valu("v_readfirstlane_b32 s16, v3", ["v3"], ["s16"])
        a.valu("v_lshlrev_b32 v1, 4, v0", ["v0"], ["v1"])
        a.valu("v_add_u32 v2, 0x10000, v1", ["v1"], ["v2"])
        a.valu(f"v_add_u32 v3, {LDS_K01}, v1", ["v1"], ["v3"])
        a.valu("v_and_b32 v4, 15, v0", ["v0"], ["v4"])
        a.valu("v_lshrrev_b32 v5, 4, v0", ["v0"], ["v5"])
        a.valu("v_lshlrev_b32 v6, 9, v4", ["v4"], ["v6"])
        a.valu("v_lshl_add_u32 v6, v5, 5, v6", ["v5", "v6"], ["v6"])
        a.valu("v_and_b32 v7, 2, v4", ["v4"], ["v7"])
        a.valu("v_lshlrev_b32 v7, 2, v7", ["v7"], ["v7"])
        a.valu("v_lshrrev_b32 v8, 2, v4", ["v4"], ["v8"])
        a.valu("v_lshl_add_u32 v7, v8, 1, v7", ["v8", "v7"], ["v7"])
        a.valu("v_and_b32 v8, 1, v4", ["v4"], ["v8"])
        a.valu("v_add_u32 v7, v7, v8", ["v7", "v8"], ["v7"])
        a.valu("v_lshlrev_b32 v7, 4, v7", ["v7"], ["v7"])
        a.valu("v_lshl_add_u32 v7, v5, 11, v7", ["v5", "v7"], ["v7"])
        a.valu("v_lshlrev_b32 v8, 4, v5", ["v5"], ["v8"])
        a.valu("v_lshlrev_b32 v9, 3, v5", ["v5"], ["v9"])
        a.valu("v_lshlrev_b32 v10, 8, v4", ["v4"], ["v10"])
        a.valu("v_lshl_add_u32 v10, v5, 4, v10", ["v5", "v10"], ["v10"])
        a.valu(f"v_mov_b32 v14, {LDS_MSG}", [], ["v14"])
        a.salu("s_and_b32 s72, s2, 7", ["s2"], ["s72"])
        a.salu("s_lshr_b32 s73, s2, 3", ["s2"], ["s73"])
        a.salu("s_and_b32 s75, s73, 3", ["s73"], ["s75"])
        a.salu("s_lshl_b32 s88, s72, 2", ["s72"], ["s88"])
        a.salu("s_add_u32 s88, s88, s75", ["s88", "s75"], ["s88"])
        a.salu("s_lshr_b32 s75, s73, 2", ["s73"], ["s75"])
        a.salu("s_lshl_b32 s88, s88, 19", ["s88"], ["s88"])
        a.salu("s_lshl_b32 s75, s75, 16", ["s75"], ["s75"])
        a.salu("s_add_u32 s88, s88, s75", ["s88", "s75"], ["s88"])
        a.salu("s_lshl_b32 s75, s16, 14", ["s16"], ["s75"])
        a.salu("s_add_u32 s88, s88, s75", ["s88", "s75"], ["s88"])
        a.salu("s_add_u32 s89, s88, 4096", ["s88"], ["s89"])
        a.salu("s_add_u32 s90, s88, 8192", ["s88"], ["s90"])
        a.salu("s_add_u32 s91, s88, 12288", ["s88"], ["s91"])
        a.salu(f"s_mov_b32 s18, 0x{f32bits(THR):08x}", [], ["s18"])
        a.salu("s_lshl_b32 s20, s16, 13", ["s16"], ["s20"])
        a.salu("s_lshl_b32 s23, s72, 19", ["s72"], ["s23"])
        a.salu("s_and_b32 s75, s16, 1", ["s16"], ["s75"])
        a.salu("s_lshr_b32 s76, s16, 1", ["s16"], ["s76"])
        a.salu("s_lshl_b32 s77, s75, 1", ["s75"], ["s77"])
        a.salu("s_add_u32 s76, s76, s77", ["s76", "s77"], ["s76"])
        a.salu("s_lshl_b32 s77, s73, 1", ["s73"], ["s77"])
        a.salu("s_add_u32 s76, s76, s77", ["s76", "s77"], ["s76"])
        a.salu("s_lshl_b32 s22, s76, 13", ["s76"], ["s22"])
        a.salu("s_and_b32 s22, s22, 0x7ffff", ["s22"], ["s22"])
        a.salu("s_cmp_eq_u32 s75, 1", ["s75"], ["scc"])
        a.salu(f"s_cselect_b32 s76, 0, {VWS}", ["scc"], ["s76"])
        a.salu("s_add_u32 s23, s23, s76", ["s23", "s76"], ["s23"])
        a.salu("s_add_u32 s74, s73, 1", ["s73"], ["s74"])
        a.salu("s_and_b32 s74, s74, 31", ["s74"], ["s74"])
        a.salu("s_add_u32 s83, s73, 2", ["s73"], ["s83"])
        a.salu("s_and_b32 s83, s83, 31", ["s83"], ["s83"])
        a.salu("s_lshl_b32 s75, s16, 10", ["s16"], ["s75"])
        a.valu("v_add_u32 v11, s75, v1", ["s75", "v1"], ["v11"])
        a.valu("v_add_u32 v13, s75, v3", ["s75", "v3"], ["v13"])
        a.salu("s_lshr_b32 s75, s16, 1", ["s16"], ["s75"])
        a.salu("s_lshl_b32 s75, s75, 14", ["s75"], ["s75"])
        a.salu("s_and_b32 s76, s16, 1", ["s16"], ["s76"])
        a.salu("s_lshl_b32 s76, s76, 12", ["s76"], ["s76"])
        a.salu("s_add_u32 s75, s75, s76", ["s75", "s76"], ["s75"])
        a.valu("v_add_u32 v15, s75, v1", ["s75", "v1"], ["v15"])
        a.salu("s_lshl_b32 s76, s72, 5", ["s72"], ["s76"])
        a.valu("v_mov_b32 v12, s76", ["s76"], ["v12"])
        a.other("s_waitcnt lgkmcnt(0)")
        for base, lo, nb in ((4, 24, 16777216), (8, 42, WS_BYTES), (12, 38, 16777216), (44, 26, 8388608), (48, 28, 8388608),
                             (52, 30, 65536), (56, 32, 65536), (60, 34, 32768), (64, 36, 32768), (68, 40, 256)):
            a.salu(f"s_mov_b32 s{base}, s{lo}", [], [f"s{base}"])
            a.salu(f"s_mov_b32 s{base + 1}, s{lo + 1}", [], [f"s{base + 1}"])
            a.salu(f"s_mov_b32 s{base + 2}, {nb}", [], [f"s{base + 2}"])
            a.salu(f"s_mov_b32 s{base + 3}, 0x00020000", [], [f"s{base + 3}"])
        K0, V0 = 16, 48
        KP0, VP0 = 176, 184
        SC, T, CS, OUTS = 216, 232, 240, [244, 248, 252]
        self.vm = []
        self.outi = 0
        self.tile_sregs("s73")
        self.load_k(K0, KP0, "k0")
        self.load_v(V0, VP0, "v0")
        self.gdest("s73")
        a.valu(f"v_mov_b32 v{CS}, 0x{f32bits(CSCALE):08x}", [], [f"v{CS}"])
        a.valu(f"v_mov_b32 v{CS + 1}, 0x{f32bits(CSCALE):08x}", [], [f"v{CS + 1}"])
        for r in range(128):
            a.valu(f"v_accvgpr_write_b32 a{r}, 0", [], [f"a{r}"])

        def sink_k0(e, o):
            self.gstore_k(e, o)
            self.lds_write("v13", 4096 * e, o)

        self.proc_k(K0, KP0, "k0", SC, T, CS, OUTS, sink_k0)
        self.proc_v(V0, VP0, "v0", SC, T, OUTS, self.gstore_v)
        self.stamp(1, True)
        for qb in range(4):
            for ks in range(4):
                d = rr("a", Q(qb, ks), 4)
                so = ["s88", "s89", "s90", "s91"][qb]
                self.vmem(f"buffer_load_dwordx4 {d}, v10, s[4:7], {so} offen offset:{64 * ks} nt", ["v10", "s[4:7]", so], [d], "q")
        for qb in range(4):
            a.valu(f"v_mov_b32 v{L(qb)}, 0", [], [f"v{L(qb)}"])
        a.other("s_waitcnt vmcnt(16) lgkmcnt(0)")
        self.stamp(4, True)
        a.other("s_barrier")
        self.stamp(2, True)
        a.salu("s_cmp_lg_u32 s16, 0", ["s16"], ["scc"])
        a.other("s_cbranch_scc1 L_noflag")
        a.salu("s_lshl_b32 s75, 1, s73", ["s73"], ["s75"])
        a.valu("v_mov_b32 v13, s75", ["s75"], ["v13"])
        a.salu("s_mov_b64 s[78:79], exec", [], ["s78", "s79"])
        a.salu("s_mov_b64 exec, 1", [], ["exec"])
        a.add(Inst("buffer_atomic_or v13, v12, s[68:71], 0 offen sc1", "store", ["v13", "v12", "s[68:71]"], []))
        a.salu("s_mov_b64 exec, s[78:79]", ["s78", "s79"], ["exec"])
        a.label("L_noflag")
        for f in range(16):
            d = rr("a", 192 + 4 * f, 4)
            a.add(Inst(f"ds_read_b128 {d}, v3 offset:{1024 * f}", "ds", ["v3"], [d]))
        a.other("s_waitcnt vmcnt(0) lgkmcnt(8)")
        self.stamp(3, True)
        for f in range(8):
            tb, ks = f >> 2, f & 3
            for qb in range(4):
                d = rr("v", S(0, tb, qb), 4)
                self.mfma(d, rr("a", 192 + 4 * f, 4), rr("a", Q(qb, ks), 4), "0" if ks == 0 else d)
        a.nop(8)
        for qb in range(4):
            self.rowmax(0, qb, 150 + qb, 158)
        for qb in range(4):
            for r in range(4):
                a.valu(f"v_sub_f32 v{NEGM(qb) + r}, 0, v{150 + qb}", [f"v{150 + qb}"], [f"v{NEGM(qb) + r}"])
            for tb in range(2):
                for r in range(4):
                    x = S(0, tb, qb) + r
                    a.valu(f"v_sub_f32 v{x}, v{x}, v{150 + qb}", [f"v{x}", f"v{150 + qb}"], [f"v{x}"])
        a.other("s_waitcnt lgkmcnt(0)")
        pi = 0
        for f in range(8):
            tb, ks = f >> 2, f & 3
            for qb in range(4):
                d = rr("v", S(1, tb, qb), 4)
                self.mfma(d, rr("a", 192 + 4 * (8 + f), 4), rr("a", Q(qb, ks), 4),
                          rr("v", NEGM(qb), 4) if ks == 0 else d)
                if qb % 2 == 0:
                    self.sm_exp(0, pi, 0)
                    self.sm_exp(0, pi, 1)
                else:
                    self.sm_add_a(0, pi)
                    self.sm_add_b(0, pi)
                    self.sm_cvt(0, pi)
                    pi += 1
        assert pi == 16
        self.sm_exp(1, 0, 0)
        self.sm_exp(1, 0, 1)
        self.stamp(12, True)
        self.flag_wait()
        self.stamp(13, True)
        for sl in range(3):
            self.dma_addr()
            for hf in range(2):
                a.salu(f"s_add_u32 m0, s20, {sl * 32768 + hf * 4096}", ["s20"], ["m0", "scc"])
                a.nop(1)
                for k in range(4):
                    self.dma_piece("s19" if hf == 0 else "s21", k)
        a.other("s_waitcnt vmcnt(16)")
        a.other("s_barrier")
        for F in range(R - 1):
            self.ds_read_frag(F)
        self.wait_frag(0)
        self.stamp(5, True)
        self.stamp(6)
        if STAMPS:
            a.other("s_waitcnt lgkmcnt(0)")
        a.salu("s_mov_b32 s17, 0", [], ["s17"])
        a.raw(".p2align 6")
        a.label("L_loop")
        for i in range(4):
            self.iteration(i)
        a.salu("s_add_u32 s17, s17, 1", ["s17"], ["s17", "scc"])
        a.salu("s_cmp_lt_u32 s17, 7", ["s17"], ["scc"])
        a.other("s_cbranch_scc1 L_loop")
        self.reads = [F + 24 * 32 for F in self.reads]
        self.iteration(28, dma=True, vm=8)
        self.iteration(29, dma=False, vm=8)
        self.iteration(30, dma=False, vm=0)
        self.iteration(31, dma=False, barrier=False)
        self.stamp(7, True)
        self.stamp(8)
        for qb in range(4):
            self.xlane(L(qb), 158, "v_add_f32")
        for qb in range(4):
            a.trans(f"v_rcp_f32 v{150 + 2 * qb}, v{L(qb)}", [f"v{L(qb)}"], [f"v{150 + 2 * qb}"])
        a.nop(4)
        k = 0
        for half in range(2):
            for qb in range(4):
                so = ["s88", "s89", "s90", "s91"][qb]
                tb_ = 176 + (k % 3) * 24
                k += 1
                pkb = tb_ + 16
                for r in range(4):
                    for c in range(4):
                        t = tb_ + 4 * r + c
                        x = O(4 * half + c, qb) + r
                        a.valu(f"v_accvgpr_read_b32 v{t}, a{x}", [f"a{x}"], [f"v{t}"])
                il = 150 + 2 * qb
                for j in range(8):
                    t = tb_ + 2 * j
                    a.valu(f"v_pk_mul_f32 v[{t}:{t + 1}], v[{t}:{t + 1}], v[{il}:{il + 1}] op_sel:[0,0] op_sel_hi:[1,0]",
                           [f"v[{t}:{t + 1}]", f"v{il}"], [f"v[{t}:{t + 1}]"])
                for j in range(8):
                    self.cvt(pkb + j, tb_ + 2 * j, tb_ + 2 * j + 1)
                for hh in range(2):
                    d = rr("v", pkb + 4 * hh, 4)
                    a.add(Inst(f"buffer_store_dwordx4 {d}, v10, s[12:15], {so} offen offset:{128 * half + 64 * hh}{OSTORE}", "store",
                               [d, "v10", "s[12:15]", so], []))
        self.stamp(9, True)
        self.dump_stamps(14)
        a.label("L_done")
        a.other("s_endpgm")
        for k, cur in self.tramps:
            a.label(f"L_tramp_{k}")
            a.other(f"s_call_b64 s[86:87], L_slow_{cur}", [], ["s86", "s87"])
            a.other(f"s_branch L_back_{k}")
        self.slow(0)
        self.slow(1)
        a.label("L_fb")
        a.salu("s_not_b32 s75, s17", ["s17"], ["s75"])
        a.salu("s_ff1_i32_b32 s74, s75", ["s75"], ["s74"])
        a.salu("s_bitset1_b32 s17, s74", ["s17", "s74"], ["s17"])
        a.other("s_call_b64 s[84:85], L_deq", [], ["s84", "s85"])
        a.nop(4)
        a.salu("s_cmp_lg_u32 s17, -1", ["s17"], ["scc"])
        a.other("s_cbranch_scc1 L_fb")
        a.other("s_waitcnt vmcnt(0)")
        a.other("s_barrier")
        a.other("s_branch L_ready")
        self.fallback_deq()
        n = a.pad_hazards(verbose="-v" in sys.argv)
        print("main: hazard pads inserted:", n, file=sys.stderr)
        return a.text()


HEADER = f"""; Kernarg layout for this problem (80 bytes, ptrs only, base s[0:1]):
; @launch grid=(256,1,1) block=(256,1,1) lds={LDS_BYTES}
.amdgcn_target "amdgcn-amd-amdhsa--gfx950"
.text
"""


def kd(name, vgpr, sgpr, accum):
    return f""".amdhsa_kernel {name}
  .amdhsa_next_free_vgpr {vgpr}
  .amdhsa_next_free_sgpr {sgpr}
  .amdhsa_accum_offset {accum}
  .amdhsa_group_segment_fixed_size 0
  .amdhsa_kernarg_size 80
  .amdhsa_user_sgpr_count 2
  .amdhsa_user_sgpr_kernarg_segment_ptr 1
  .amdhsa_system_sgpr_workgroup_id_x 1
  .amdhsa_float_denorm_mode_32 3
  .amdhsa_float_denorm_mode_16_64 3
.end_amdhsa_kernel
"""


def main():
    out = HEADER
    out += f".globl {MAIN}\n.p2align 8\n.type {MAIN},@function\n"
    out += Main().gen()
    out += '.section .rodata,"a"\n.p2align 6\n'
    out += kd(MAIN, 512, 102, 256)
    path = sys.argv[1] if len(sys.argv) > 1 and not sys.argv[1].startswith("-") else f"cdna_kernels/{NAME}.s"
    open(path, "w").write(out)
    print("wrote", path, len(out), "bytes", file=sys.stderr)


if __name__ == "__main__":
    main()
```

```python
import math
import struct
import sys

from asmlib import Asm, Inst, rr

NAME = "standalone__kv_cache_quant_int4_int2_kv_with_per_channel_or_per_token_scales__prompt"
MAIN = NAME + "_kernel"


def f32bits(x):
    return struct.unpack("<I", struct.pack("<f", x))[0]


CSCALE = (128.0 ** -0.5) * math.log2(math.e)
THR = 65536.0

VWS = 4 << 20
WS_BYTES = 8 << 20
R = 8
LDS_K01 = 131072
LDS_MSG = 147456
LDS_BYTES = 147456 + 256
POLL_LIMIT = 1 if "--forcefb" in sys.argv else 20000

STAMPS = "--stamps" in sys.argv
SLEEP = int(sys.argv[sys.argv.index("--sleep") + 1]) if "--sleep" in sys.argv else 12
WSTORE = " sc1 nt" if "--wnt" in sys.argv else (" sc0 sc1" if "--w01" in sys.argv else (" sc0 sc1 nt" if "--w01nt" in sys.argv else " sc1"))
OSTORE = " nt" if "--ont" in sys.argv else (" sc0 sc1" if "--osc01" in sys.argv else (" sc1 nt" if "--osc1nt" in sys.argv else ("" if "--oplain" in sys.argv else " sc1")))
STAMP_REGS = [92, 94, 96, 98, 100, 24, 26, 28, 30, 32, 34, 36, 38, 40]


def S(buf, tb, qb):
    return 16 + buf * 32 + tb * 16 + qb * 4


def P(buf, qb):
    return 80 + buf * 16 + qb * 4


def NEGM(qb):
    return 112 + qb * 4


def TMP(pair):
    return 128 + 2 * (pair % 4)


def PS(buf, qb):
    return 136 + buf * 4 + qb


def L(qb):
    return 144 + qb


CHK = 148


def O(db, qb):
    return (db * 4 + qb) * 4


def Q(qb, ks):
    return 128 + (qb * 4 + ks) * 4


def RING(F):
    return 192 + 4 * (F % R)


class Main:
    def __init__(self):
        self.a = Asm()
        self.reads = []
        self.nslow = 0
        self.tramps = []
        self.vm = []

    def stamp(self, k, real=False):
        if STAMPS:
            r = STAMP_REGS[k]
            op = "s_memrealtime" if real else "s_memtime"
            self.a.salu(f"{op} s[{r}:{r + 1}]", [], [f"s{r}", f"s{r + 1}"])

    def dump_stamps(self, n):
        if not STAMPS:
            return
        a = self.a
        a.other("s_waitcnt vmcnt(0) lgkmcnt(0)")
        self.stamp(10)
        self.stamp(11, True)
        a.other("s_waitcnt lgkmcnt(0)")
        a.salu("s_mov_b32 s10, 0x10000000", [], ["s10"])
        a.salu("s_lshl_b32 s3, s2, 2", ["s2"], ["s3"])
        a.salu("s_add_u32 s3, s3, s16", ["s3", "s16"], ["s3"])
        a.salu("s_lshl_b32 s3, s3, 6", ["s3"], ["s3"])
        a.salu("s_add_u32 s3, s3, 0x1000000", ["s3"], ["s3"])
        a.valu("v_mov_b32 v1, s3", ["s3"], ["v1"])
        for k in range(n):
            a.valu(f"v_mov_b32 v2, s{STAMP_REGS[k]}", [f"s{STAMP_REGS[k]}"], ["v2"])
            a.add(Inst(f"buffer_store_dword v2, v1, s[8:11], 0 offen offset:{4 * k}", "store", ["v2", "v1"], []))
            a.nop(2)

    def mfma(self, D, A, B, C):
        srcc = [] if C == "0" else [C]
        self.a.add(Inst(f"v_mfma_f32_16x16x32_bf16 {D}, {A}, {B}, {C}", "mfma", [A, B], [D], srcc=srcc, passes=4))

    def vmem(self, text, rd, wr, tag=None, store=False):
        self.a.add(Inst(text, "store" if store else "vmem", rd, wr))
        self.vm.append(tag)

    def wait_vm(self, tag):
        idx = len(self.vm) - 1 - self.vm[::-1].index(tag)
        n = len(self.vm) - 1 - idx
        assert n <= 63
        self.a.other(f"s_waitcnt vmcnt({n})")

    def ds_read_frag(self, F):
        slot = (F // 32) % 4
        n = F % 32
        off = slot * 32768 + n * 1024
        base = "v1" if off < 65536 else "v2"
        off %= 65536
        d = rr("a", RING(F), 4)
        self.a.add(Inst(f"ds_read_b128 {d}, {base} offset:{off}", "ds", [base], [d]))
        self.reads.append(F)

    def wait_frag(self, F):
        idx = self.reads.index(F)
        n = len(self.reads) - 1 - idx
        self.a.other(f"s_waitcnt lgkmcnt({n})")

    def exp(self, dst, src):
        self.a.trans(f"v_exp_f32 v{dst}, v{src}", [f"v{src}"], [f"v{dst}"])

    def add(self, dst, x, y):
        self.a.valu(f"v_add_f32 v{dst}, v{x}, v{y}", [f"v{x}", f"v{y}"], [f"v{dst}"])

    def cvt(self, dst, x, y):
        self.a.valu(f"v_cvt_pk_bf16_f32 v{dst}, v{x}, v{y}", [f"v{x}", f"v{y}"], [f"v{dst}"])

    @staticmethod
    def pair_info(pi):
        return pi >> 3, (pi >> 1) & 3, pi & 1

    def sm_exp(self, buf, pi, which):
        tb, qb, hf = self.pair_info(pi)
        self.exp(TMP(pi) + which, S(buf, tb, qb) + 2 * hf + which)

    def sm_add_a(self, buf, pi):
        tb, qb, hf = self.pair_info(pi)
        if tb == 0 and hf == 0:
            return False
        self.add(PS(buf, qb), PS(buf, qb), TMP(pi))
        return True

    def sm_add_b(self, buf, pi):
        tb, qb, hf = self.pair_info(pi)
        if tb == 0 and hf == 0:
            self.add(PS(buf, qb), TMP(pi), TMP(pi) + 1)
        else:
            self.add(PS(buf, qb), PS(buf, qb), TMP(pi) + 1)

    def sm_cvt(self, buf, pi):
        tb, qb, hf = self.pair_info(pi)
        self.cvt(P(buf, qb) + 2 * tb + hf, TMP(pi), TMP(pi) + 1)

    def cycle(self, u, F0, has_qk=True, has_sm=True, has_next=True, extra=None):
        a = self.a
        cur = (u + 1) % 2
        nxt = u % 2
        extra = extra or {}
        lacc_q = [0, 1, 2, 3]
        chk = has_sm and "--nochk" not in sys.argv
        for g in range(16):
            F = F0 + g
            phaseA = g < 8
            do_mfma = phaseA or has_qk
            if g <= 14:
                pb, pi = cur, g + 1
                pvalid = has_sm
            else:
                pb, pi = nxt, 0
                pvalid = has_next
            qb_, qi = cur, g
            qvalid = has_sm
            for m in range(4):
                if do_mfma:
                    fr = rr("a", RING(F), 4)
                    if phaseA:
                        d = rr("a", O(g, m), 4)
                        self.mfma(d, fr, rr("v", P(nxt, m), 4), d)
                    else:
                        tb, ks = (g - 8) >> 2, (g - 8) & 3
                        d = rr("v", S(nxt, tb, m), 4)
                        c = rr("v", NEGM(m), 4) if ks == 0 else d
                        self.mfma(d, fr, rr("a", Q(m, ks), 4), c)
                for fn in extra.get((g, m), []):
                    fn()
                if m == 0:
                    Fn = F + R - 1
                    if self.frag_needed(Fn):
                        self.ds_read_frag(Fn)
                    if qvalid:
                        self.sm_add_b(qb_, qi)
                elif m == 1:
                    if pvalid:
                        self.sm_exp(pb, pi, 0)
                    if g == 0 and lacc_q:
                        q = lacc_q.pop(0)
                        self.add(L(q), L(q), PS(nxt, q))
                    if g == 14 and chk and "--nochkv" not in sys.argv:
                        a.valu(f"v_max3_f32 v{CHK}, v{PS(cur, 0)}, v{PS(cur, 1)}, v{PS(cur, 2)}",
                               [f"v{PS(cur, 0)}", f"v{PS(cur, 1)}", f"v{PS(cur, 2)}"], [f"v{CHK}"])
                    if g == 15 and chk and "--nochkv" not in sys.argv:
                        a.valu(f"v_max_f32 v{CHK}, v{CHK}, v{PS(cur, 3)}", [f"v{CHK}", f"v{PS(cur, 3)}"], [f"v{CHK}"])
                elif m == 2:
                    if qvalid:
                        self.sm_cvt(qb_, qi)
                    did = self.sm_add_a(pb, pi) if pvalid else False
                    if not did:
                        if g == 15:
                            if chk and "--nochkv" not in sys.argv:
                                a.valu(f"v_cmp_lt_f32 vcc, s18, v{CHK}", ["s18", f"v{CHK}"], ["vcc"])
                        elif lacc_q:
                            q = lacc_q.pop(0)
                            self.add(L(q), L(q), PS(nxt, q))
                else:
                    Fw = F + 1
                    if Fw in self.reads and self.frag_needed(Fw):
                        self.wait_frag(Fw)
                    if pvalid:
                        self.sm_exp(pb, pi, 1)
                    if g == 15 and chk and "--nochkb" not in sys.argv:
                        k = self.nslow
                        self.nslow += 1
                        a.other(f"s_cbranch_vccnz L_tramp_{k}", ["vcc"])
                        a.label(f"L_back_{k}")
                        self.tramps.append((k, cur))
        assert not lacc_q

    def frag_needed(self, F):
        if F >= 32 * 32:
            return False
        if F // 32 == 31 and ((F % 32) >> 3) in (1, 3):
            return False
        return True

    def dma_piece(self, so, k):
        self.a.add(Inst(f"buffer_load_dwordx4 v1, s[8:11], {so} offen offset:{1024 * (k & 3)} sc1 lds", "vmem",
                        ["v1", "s[8:11]", so, "m0"], []))

    def dma_addr(self):
        a = self.a
        a.salu("s_add_u32 s19, s23, s22", ["s23", "s22"], ["s19", "scc"])
        a.salu("s_add_u32 s21, s19, 4096", ["s19"], ["s21", "scc"])
        a.salu("s_add_u32 s22, s22, 16384", ["s22"], ["s22", "scc"])
        a.salu("s_and_b32 s22, s22, 0x7ffff", ["s22"], ["s22", "scc"])

    def flag_wait(self):
        a = self.a
        a.salu("s_cmp_lg_u32 s16, 0", ["s16"], ["scc"])
        a.other("s_cbranch_scc1 L_nopoll")
        a.salu("s_mov_b64 s[78:79], exec", [], ["s78", "s79"])
        a.salu("s_mov_b64 exec, 1", [], ["exec"])
        a.salu("s_mov_b32 s77, 0", [], ["s77"])
        a.label("L_poll")
        a.add(Inst("buffer_load_dword v13, v12, s[68:71], 0 offen sc1", "vmem", ["v12", "s[68:71]"], ["v13"]))
        a.other("s_waitcnt vmcnt(0)")
        a.valu("v_readfirstlane_b32 s75, v13", ["v13"], ["s75"])
        a.nop(2)
        a.salu("s_cmp_eq_u32 s75, -1", ["s75"], ["scc"])
        a.other("s_cbranch_scc1 L_polled")
        a.other(f"s_sleep {SLEEP}")
        a.salu("s_add_u32 s77, s77, 1", ["s77"], ["s77"])
        a.salu(f"s_cmp_lt_u32 s77, {POLL_LIMIT}", ["s77"], ["scc"])
        a.other("s_cbranch_scc1 L_poll")
        a.label("L_polled")
        a.add(Inst("ds_write_b32 v14, v13", "ds", ["v14", "v13"], []))
        a.salu("s_mov_b64 exec, s[78:79]", ["s78", "s79"], ["exec"])
        a.other("s_waitcnt lgkmcnt(0)")
        a.label("L_nopoll")
        a.other("s_barrier")
        a.add(Inst("ds_read_b32 v13, v14", "ds", ["v14"], ["v13"]))
        a.other("s_waitcnt lgkmcnt(0)")
        a.valu("v_readfirstlane_b32 s17, v13", ["v13"], ["s17"])
        a.nop(2)
        a.salu("s_cmp_lg_u32 s17, -1", ["s17"], ["scc"])
        a.other("s_cbranch_scc1 L_fb")
        a.label("L_ready")

    def iteration(self, i, dma=True, vm=8, barrier=True, first=False):
        a = self.a
        ex0 = {}
        ex1 = {}
        if "--nodma" in sys.argv and not first:
            dma = False
            vm = 0
        if "--nobar" in sys.argv and not first:
            barrier = False
        if first:
            ex1[(4, 2)] = [self.flag_wait]
        elif barrier:
            def bar():
                a.other(f"s_waitcnt vmcnt({vm})")
                a.other("s_barrier")
            ex1[(4, 2)] = [bar]
        if dma:
            slots = [2, 3] if first else [(i + 3) % 4]
            sites = [(g, m) for g in range(5, 13) for m in ((1, 3) if first else (1,))]
            n = 0
            for dslot in slots:
                for k in range(8):
                    g, m = sites[n]
                    n += 1
                    fns = []
                    if k == 0:
                        fns.append(self.dma_addr)
                        fns.append(lambda dslot=dslot: a.salu(f"s_add_u32 m0, s20, {dslot * 32768}", ["s20"], ["m0", "scc"]))
                    if k == 4:
                        fns.append(lambda dslot=dslot: a.salu(f"s_add_u32 m0, s20, {dslot * 32768 + 4096}", ["s20"], ["m0", "scc"]))
                    ex1.setdefault((g, m - 1), []).extend(fns)
                    so = "s19" if k < 4 else "s21"
                    ex1.setdefault((g, m), []).append(lambda so=so, k=k: self.dma_piece(so, k))
        u0 = 2 * i
        last = i == 31
        self.cycle(u0, 32 * i, has_qk=not last, has_sm=True, has_next=not last, extra=ex0)
        self.cycle(u0 + 1, 32 * i + 16, has_qk=not last, has_sm=not last, has_next=not last, extra=ex1)

    def rowmax(self, buf, qb, dst, t):
        a = self.a
        s0, s1 = S(buf, 0, qb), S(buf, 1, qb)
        a.valu(f"v_max3_f32 v{dst}, v{s0}, v{s0 + 1}, v{s0 + 2}", [f"v{s0}", f"v{s0 + 1}", f"v{s0 + 2}"], [f"v{dst}"])
        a.valu(f"v_max3_f32 v{dst}, v{dst}, v{s0 + 3}, v{s1}", [f"v{dst}", f"v{s0 + 3}", f"v{s1}"], [f"v{dst}"])
        a.valu(f"v_max3_f32 v{dst}, v{dst}, v{s1 + 1}, v{s1 + 2}", [f"v{dst}", f"v{s1 + 1}", f"v{s1 + 2}"], [f"v{dst}"])
        a.valu(f"v_max_f32 v{dst}, v{dst}, v{s1 + 3}", [f"v{dst}", f"v{s1 + 3}"], [f"v{dst}"])
        self.xlane(dst, t, "v_max_f32")

    def xlane(self, dst, t, op):
        a = self.a
        for sw in ("v_permlane16_swap_b32", "v_permlane32_swap_b32"):
            a.valu(f"v_mov_b32 v{t}, v{dst}", [f"v{dst}"], [f"v{t}"])
            a.add(Inst(f"{sw} v{dst}, v{t}", "perm", [f"v{dst}", f"v{t}"], [f"v{dst}", f"v{t}"]))
            a.valu(f"{op} v{dst}, v{dst}, v{t}", [f"v{dst}", f"v{t}"], [f"v{dst}"])

    def slow(self, cur):
        a = self.a
        nxt = 1 - cur
        a.label(f"L_slow_{cur}")
        a.nop(16)
        DL, FF, T0 = 150, 154, 158
        for qb in range(4):
            self.rowmax(cur, qb, DL + qb, T0)
            a.valu(f"v_ceil_f32 v{DL + qb}, v{DL + qb}", [f"v{DL + qb}"], [f"v{DL + qb}"])
            a.valu(f"v_max_f32 v{DL + qb}, 0, v{DL + qb}", [f"v{DL + qb}"], [f"v{DL + qb}"])
            a.trans(f"v_exp_f32 v{FF + qb}, -v{DL + qb}", [f"v{DL + qb}"], [f"v{FF + qb}"])
        for qb in range(4):
            d, f = DL + qb, FF + qb
            for r in range(4):
                x = NEGM(qb) + r
                a.valu(f"v_sub_f32 v{x}, v{x}, v{d}", [f"v{x}", f"v{d}"], [f"v{x}"])
            for b in (cur, nxt):
                for tb in range(2):
                    for r in range(4):
                        x = S(b, tb, qb) + r
                        a.valu(f"v_sub_f32 v{x}, v{x}, v{d}", [f"v{x}", f"v{d}"], [f"v{x}"])
            a.valu(f"v_mul_f32 v{L(qb)}, v{L(qb)}, v{f}", [f"v{L(qb)}", f"v{f}"], [f"v{L(qb)}"])
            for db in range(8):
                for r in range(4):
                    x = O(db, qb) + r
                    t = 160 + ((db * 4 + r) % 8)
                    a.valu(f"v_accvgpr_read_b32 v{t}, a{x}", [f"a{x}"], [f"v{t}"])
                    a.valu(f"v_mul_f32 v{t}, v{t}, v{f}", [f"v{t}", f"v{f}"], [f"v{t}"])
                    a.valu(f"v_accvgpr_write_b32 a{x}, v{t}", [f"v{t}"], [f"a{x}"])
        for pi in range(16):
            self.sm_exp(cur, pi, 0)
            self.sm_exp(cur, pi, 1)
            self.sm_add_a(cur, pi)
            self.sm_add_b(cur, pi)
            self.sm_cvt(cur, pi)
        self.sm_exp(nxt, 0, 0)
        self.sm_exp(nxt, 0, 1)
        a.nop(4)
        a.other("s_setpc_b64 s[86:87]", ["s86", "s87"])

    def unpack(self, src, dst):
        a = self.a
        for k in range(4):
            a.valu(f"v_lshlrev_b32 v{dst + 2 * k}, 16, v{src + k}", [f"v{src + k}"], [f"v{dst + 2 * k}"])
            a.valu(f"v_and_b32 v{dst + 2 * k + 1}, 0xffff0000, v{src + k}", [f"v{src + k}"], [f"v{dst + 2 * k + 1}"])

    def rnd(self, x0, T):
        a = self.a
        for k in range(4):
            self.cvt(T + k, x0 + 2 * k, x0 + 2 * k + 1)
        for k in range(4):
            a.valu(f"v_lshlrev_b32 v{x0 + 2 * k}, 16, v{T + k}", [f"v{T + k}"], [f"v{x0 + 2 * k}"])
            a.valu(f"v_and_b32 v{x0 + 2 * k + 1}, 0xffff0000, v{T + k}", [f"v{T + k}"], [f"v{x0 + 2 * k + 1}"])

    def pk(self, op, x, y, bcast, neg=False):
        mods = ""
        if bcast:
            ye = y & ~1
            sel = y & 1
            mods += f" op_sel:[0,{sel}] op_sel_hi:[1,{sel}]"
            ys = f"v[{ye}:{ye + 1}]"
        else:
            ys = f"v[{y}:{y + 1}]"
        if neg:
            mods += " neg_lo:[0,1] neg_hi:[0,1]"
        self.a.valu(f"{op} v[{x}:{x + 1}], v[{x}:{x + 1}], {ys}{mods}", [f"v[{x}:{x + 1}]", ys], [f"v[{x}:{x + 1}]"])

    def tile_sregs(self, tile_s):
        a = self.a
        a.salu("s_lshl_b32 s75, s72, 11", ["s72"], ["s75"])
        a.salu(f"s_lshl_b32 s76, {tile_s}, 6", [tile_s], ["s76"])
        a.salu("s_add_u32 s75, s75, s76", ["s75", "s76"], ["s75"])
        a.salu("s_lshl_b32 s76, s72, 5", ["s72"], ["s76"])
        a.salu(f"s_add_u32 s76, s76, {tile_s}", ["s76", tile_s], ["s76"])
        a.salu("s_lshl_b32 s76, s76, 8", ["s76"], ["s76"])
        a.salu("s_lshl_b32 s77, s16, 6", ["s16"], ["s77"])
        a.salu("s_add_u32 s76, s76, s77", ["s76", "s77"], ["s76"])
        a.salu("s_lshr_b32 s77, s16, 1", ["s16"], ["s77"])
        a.salu("s_lshl_b32 s77, s77, 5", ["s77"], ["s77"])
        a.salu("s_add_u32 s77, s77, s75", ["s77", "s75"], ["s77"])
        a.salu("s_lshl_b32 s79, s77, 9", ["s77"], ["s79"])
        a.salu("s_lshl_b32 s77, s77, 1", ["s77"], ["s77"])
        a.salu("s_and_b32 s78, s16, 1", ["s16"], ["s78"])
        a.salu("s_lshl_b32 s78, s78, 8", ["s78"], ["s78"])
        a.salu("s_add_u32 s79, s79, s78", ["s79", "s78"], ["s79"])
        a.salu("s_lshl_b32 s78, s75, 9", ["s75"], ["s78"])
        a.salu("s_lshl_b32 s80, s16, 7", ["s16"], ["s80"])
        a.salu("s_add_u32 s78, s78, s80", ["s78", "s80"], ["s78"])

    def load_k(self, KX, KP, tag, pol=" nt"):
        a = self.a
        self.vmem(f"buffer_load_dwordx4 v[{KP}:{KP + 3}], v8, s[52:55], s76 offen", ["v8", "s[52:55]", "s76"], [f"v[{KP}:{KP + 3}]"], tag + "s")
        self.vmem(f"buffer_load_dwordx4 v[{KP + 4}:{KP + 7}], v8, s[56:59], s76 offen", ["v8", "s[56:59]", "s76"], [f"v[{KP + 4}:{KP + 7}]"], tag + "s")
        for e in range(4):
            for hh in range(2):
                d = f"v[{KX + 8 * e + 4 * hh}:{KX + 8 * e + 4 * hh + 3}]"
                self.vmem(f"buffer_load_dwordx4 {d}, v6, s[44:47], s78 offen offset:{16 * hh}{pol}", ["v6", "s[44:47]", "s78"], [d], f"{tag}{e}")
            if e < 3:
                a.salu("s_add_u32 s78, s78, 8192", ["s78"], ["s78"])

    def load_v(self, VX, VP, tag, pol=" nt"):
        a = self.a
        for (p, srd) in ((VP, "s[60:63]"), (VP + 4, "s[64:67]")):
            for hh in range(2):
                self.vmem(f"buffer_load_dwordx2 v[{p + 2 * hh}:{p + 2 * hh + 1}], v9, {srd}, s77 offen offset:{32 * hh}",
                          ["v9", srd, "s77"], [f"v[{p + 2 * hh}:{p + 2 * hh + 1}]"], tag + "s")
        for j in range(8):
            if j == 4:
                a.salu("s_add_u32 s79, s79, 8192", ["s79"], ["s79"])
            d = f"v[{VX + 4 * j}:{VX + 4 * j + 3}]"
            self.vmem(f"buffer_load_dwordx4 {d}, v7, s[48:51], s79 offen offset:{512 * (j & 3)}{pol}", ["v7", "s[48:51]", "s79"], [d], tag)

    def proc_k(self, KX, KP, tag, SC, T, CS, outs, sink):
        a = self.a
        self.wait_vm(tag + "s")
        self.unpack(KP, SC)
        self.unpack(KP + 4, SC + 8)
        for e in range(4):
            x0 = KX + 8 * e
            self.wait_vm(f"{tag}{e}")
            for k in range(8):
                a.valu(f"v_cvt_f32_i32 v{x0 + k}, v{x0 + k}", [f"v{x0 + k}"], [f"v{x0 + k}"])
            self.rnd(x0, T)
            for k in range(4):
                self.pk("v_pk_add_f32", x0 + 2 * k, SC + 8 + 2 * k, False, neg=True)
            self.rnd(x0, T)
            for k in range(4):
                self.pk("v_pk_mul_f32", x0 + 2 * k, SC + 2 * k, False)
            self.rnd(x0, T)
            for k in range(4):
                self.pk("v_pk_mul_f32", x0 + 2 * k, CS, False)
            o = outs[self.outi % len(outs)]
            self.outi += 1
            for k in range(4):
                self.cvt(o + k, x0 + 2 * k, x0 + 2 * k + 1)
            sink(e, o)

    def proc_v(self, VX, VP, tag, SC, T, outs, sink):
        a = self.a
        self.wait_vm(tag + "s")
        self.unpack(VP, SC)
        self.unpack(VP + 4, SC + 8)
        self.wait_vm(tag)
        for j2 in range(4):
            x0 = VX + 8 * j2
            for k in range(8):
                a.valu(f"v_cvt_f32_i32 v{x0 + k}, v{x0 + k}", [f"v{x0 + k}"], [f"v{x0 + k}"])
            self.rnd(x0, T)
            for k in range(4):
                self.pk("v_pk_add_f32", x0 + 2 * k, SC + 8 + 2 * j2 + (k >> 1), True, neg=True)
            self.rnd(x0, T)
            for k in range(4):
                self.pk("v_pk_mul_f32", x0 + 2 * k, SC + 2 * j2 + (k >> 1), True)
        for c in range(4):
            o = outs[self.outi % len(outs)]
            self.outi += 1
            for k in range(4):
                self.cvt(o + k, VX + 4 * (2 * k) + c, VX + 4 * (2 * k + 1) + c)
            sink(c, o)

    def gdest(self, tile_s):
        a = self.a
        a.salu("s_lshl_b32 s81, s72, 19", ["s72"], ["s81"])
        a.salu(f"s_lshl_b32 s80, {tile_s}, 14", [tile_s], ["s80"])
        a.salu("s_add_u32 s81, s81, s80", ["s81", "s80"], ["s81"])
        a.salu("s_lshl_b32 s80, s16, 12", ["s16"], ["s80"])
        a.salu("s_add_u32 s82, s81, s80", ["s81", "s80"], ["s82"])
        a.salu(f"s_add_u32 s82, s82, {VWS}", ["s82"], ["s82"])
        a.salu("s_lshl_b32 s80, s16, 10", ["s16"], ["s80"])
        a.salu("s_add_u32 s81, s81, s80", ["s81", "s80"], ["s81"])

    def gstore_k(self, e, o):
        self.vmem(f"buffer_store_dwordx4 v[{o}:{o + 3}], v1, s[8:11], s81 offen{WSTORE}", [f"v[{o}:{o + 3}]", "v1", "s[8:11]", "s81"], [], "st", store=True)
        if e < 3:
            self.a.salu("s_add_u32 s81, s81, 4096", ["s81"], ["s81"])

    def gstore_v(self, c, o):
        self.vmem(f"buffer_store_dwordx4 v[{o}:{o + 3}], v1, s[8:11], s82 offen offset:{1024 * c}{WSTORE}",
                  [f"v[{o}:{o + 3}]", "v1", "s[8:11]", "s82"], [], "st", store=True)

    def lds_write(self, addr, off, o):
        self.a.add(Inst(f"ds_write_b128 {addr}, v[{o}:{o + 3}] offset:{off}", "store", [addr, f"v[{o}:{o + 3}]"], []))

    def fallback_deq(self):
        a = self.a
        a.label("L_deq")
        self.vm = []
        self.outi = 0
        X, PK_, SC, T, CS, OUTS = 168, 200, 208, 224, 228, [232, 236, 240, 244]
        a.valu(f"v_mov_b32 v{CS}, 0x{f32bits(CSCALE):08x}", [], [f"v{CS}"])
        a.valu(f"v_mov_b32 v{CS + 1}, 0x{f32bits(CSCALE):08x}", [], [f"v{CS + 1}"])
        self.tile_sregs("s74")
        self.gdest("s74")
        self.load_k(X, PK_, "k")
        self.proc_k(X, PK_, "k", SC, T, CS, OUTS, self.gstore_k)
        a.other("s_waitcnt vmcnt(0)")
        self.load_v(X, PK_, "v")
        self.proc_v(X, PK_, "v", SC, T, OUTS, self.gstore_v)
        a.other("s_waitcnt vmcnt(0)")
        a.other("s_setpc_b64 s[84:85]", ["s84", "s85"])

    def gen(self):
        a = self.a
        a.label(MAIN)
        a.salu("s_cmp_ge_u32 s2, 256", ["s2"], ["scc"])
        a.other("s_cbranch_scc1 L_done")
        self.stamp(0, True)
        a.salu("s_load_dwordx16 s[24:39], s[0:1], 0", [], ["s[24:39]"])
        a.salu("s_load_dwordx4 s[40:43], s[0:1], 64", [], ["s[40:43]"])
        a.valu("v_lshrrev_b32 v3, 6, v0", ["v0"], ["v3"])
        a.valu("v_and_b32 v0, 63, v0", ["v0"], ["v0"])
        a.valu("v_readfirstlane_b32 s16, v3", ["v3"], ["s16"])
        a.valu("v_lshlrev_b32 v1, 4, v0", ["v0"], ["v1"])
        a.valu("v_add_u32 v2, 0x10000, v1", ["v1"], ["v2"])
        a.valu(f"v_add_u32 v3, {LDS_K01}, v1", ["v1"], ["v3"])
        a.valu("v_and_b32 v4, 15, v0", ["v0"], ["v4"])
        a.valu("v_lshrrev_b32 v5, 4, v0", ["v0"], ["v5"])
        a.valu("v_lshlrev_b32 v6, 9, v4", ["v4"], ["v6"])
        a.valu("v_lshl_add_u32 v6, v5, 5, v6", ["v5", "v6"], ["v6"])
        a.valu("v_and_b32 v7, 2, v4", ["v4"], ["v7"])
        a.valu("v_lshlrev_b32 v7, 2, v7", ["v7"], ["v7"])
        a.valu("v_lshrrev_b32 v8, 2, v4", ["v4"], ["v8"])
        a.valu("v_lshl_add_u32 v7, v8, 1, v7", ["v8", "v7"], ["v7"])
        a.valu("v_and_b32 v8, 1, v4", ["v4"], ["v8"])
        a.valu("v_add_u32 v7, v7, v8", ["v7", "v8"], ["v7"])
        a.valu("v_lshlrev_b32 v7, 4, v7", ["v7"], ["v7"])
        a.valu("v_lshl_add_u32 v7, v5, 11, v7", ["v5", "v7"], ["v7"])
        a.valu("v_lshlrev_b32 v8, 4, v5", ["v5"], ["v8"])
        a.valu("v_lshlrev_b32 v9, 3, v5", ["v5"], ["v9"])
        a.valu("v_lshlrev_b32 v10, 8, v4", ["v4"], ["v10"])
        a.valu("v_lshl_add_u32 v10, v5, 4, v10", ["v5", "v10"], ["v10"])
        a.valu(f"v_mov_b32 v14, {LDS_MSG}", [], ["v14"])
        a.salu("s_and_b32 s72, s2, 7", ["s2"], ["s72"])
        a.salu("s_lshr_b32 s73, s2, 3", ["s2"], ["s73"])
        a.salu("s_and_b32 s75, s73, 3", ["s73"], ["s75"])
        a.salu("s_lshl_b32 s88, s72, 2", ["s72"], ["s88"])
        a.salu("s_add_u32 s88, s88, s75", ["s88", "s75"], ["s88"])
        a.salu("s_lshr_b32 s75, s73, 2", ["s73"], ["s75"])
        a.salu("s_lshl_b32 s88, s88, 19", ["s88"], ["s88"])
        a.salu("s_lshl_b32 s75, s75, 16", ["s75"], ["s75"])
        a.salu("s_add_u32 s88, s88, s75", ["s88", "s75"], ["s88"])
        a.salu("s_lshl_b32 s75, s16, 14", ["s16"], ["s75"])
        a.salu("s_add_u32 s88, s88, s75", ["s88", "s75"], ["s88"])
        a.salu("s_add_u32 s89, s88, 4096", ["s88"], ["s89"])
        a.salu("s_add_u32 s90, s88, 8192", ["s88"], ["s90"])
        a.salu("s_add_u32 s91, s88, 12288", ["s88"], ["s91"])
        a.salu(f"s_mov_b32 s18, 0x{f32bits(THR):08x}", [], ["s18"])
        a.salu("s_lshl_b32 s20, s16, 13", ["s16"], ["s20"])
        a.salu("s_lshl_b32 s23, s72, 19", ["s72"], ["s23"])
        a.salu("s_and_b32 s75, s16, 1", ["s16"], ["s75"])
        a.salu("s_lshr_b32 s76, s16, 1", ["s16"], ["s76"])
        a.salu("s_lshl_b32 s77, s75, 1", ["s75"], ["s77"])
        a.salu("s_add_u32 s76, s76, s77", ["s76", "s77"], ["s76"])
        a.salu("s_lshl_b32 s77, s73, 1", ["s73"], ["s77"])
        a.salu("s_add_u32 s76, s76, s77", ["s76", "s77"], ["s76"])
        a.salu("s_lshl_b32 s22, s76, 13", ["s76"], ["s22"])
        a.salu("s_and_b32 s22, s22, 0x7ffff", ["s22"], ["s22"])
        a.salu("s_cmp_eq_u32 s75, 1", ["s75"], ["scc"])
        a.salu(f"s_cselect_b32 s76, 0, {VWS}", ["scc"], ["s76"])
        a.salu("s_add_u32 s23, s23, s76", ["s23", "s76"], ["s23"])
        a.salu("s_add_u32 s74, s73, 1", ["s73"], ["s74"])
        a.salu("s_and_b32 s74, s74, 31", ["s74"], ["s74"])
        a.salu("s_add_u32 s83, s73, 2", ["s73"], ["s83"])
        a.salu("s_and_b32 s83, s83, 31", ["s83"], ["s83"])
        a.salu("s_lshl_b32 s75, s16, 10", ["s16"], ["s75"])
        a.valu("v_add_u32 v11, s75, v1", ["s75", "v1"], ["v11"])
        a.valu("v_add_u32 v13, s75, v3", ["s75", "v3"], ["v13"])
        a.salu("s_lshr_b32 s75, s16, 1", ["s16"], ["s75"])
        a.salu("s_lshl_b32 s75, s75, 14", ["s75"], ["s75"])
        a.salu("s_and_b32 s76, s16, 1", ["s16"], ["s76"])
        a.salu("s_lshl_b32 s76, s76, 12", ["s76"], ["s76"])
        a.salu("s_add_u32 s75, s75, s76", ["s75", "s76"], ["s75"])
        a.valu("v_add_u32 v15, s75, v1", ["s75", "v1"], ["v15"])
        a.salu("s_lshl_b32 s76, s72, 5", ["s72"], ["s76"])
        a.valu("v_mov_b32 v12, s76", ["s76"], ["v12"])
        a.other("s_waitcnt lgkmcnt(0)")
        for base, lo, nb in ((4, 24, 16777216), (8, 42, WS_BYTES), (12, 38, 16777216), (44, 26, 8388608), (48, 28, 8388608),
                             (52, 30, 65536), (56, 32, 65536), (60, 34, 32768), (64, 36, 32768), (68, 40, 256)):
            a.salu(f"s_mov_b32 s{base}, s{lo}", [], [f"s{base}"])
            a.salu(f"s_mov_b32 s{base + 1}, s{lo + 1}", [], [f"s{base + 1}"])
            a.salu(f"s_mov_b32 s{base + 2}, {nb}", [], [f"s{base + 2}"])
            a.salu(f"s_mov_b32 s{base + 3}, 0x00020000", [], [f"s{base + 3}"])
        K0, V0 = 16, 48
        KP0, VP0 = 176, 184
        SC, T, CS, OUTS = 216, 232, 240, [244, 248, 252]
        self.vm = []
        self.outi = 0
        self.tile_sregs("s73")
        self.load_k(K0, KP0, "k0")
        self.load_v(V0, VP0, "v0")
        self.gdest("s73")
        a.valu(f"v_mov_b32 v{CS}, 0x{f32bits(CSCALE):08x}", [], [f"v{CS}"])
        a.valu(f"v_mov_b32 v{CS + 1}, 0x{f32bits(CSCALE):08x}", [], [f"v{CS + 1}"])
        for r in range(128):
            a.valu(f"v_accvgpr_write_b32 a{r}, 0", [], [f"a{r}"])

        def sink_k0(e, o):
            self.gstore_k(e, o)
            self.lds_write("v13", 4096 * e, o)

        self.proc_k(K0, KP0, "k0", SC, T, CS, OUTS, sink_k0)
        self.proc_v(V0, VP0, "v0", SC, T, OUTS, self.gstore_v)
        self.stamp(1, True)
        for qb in range(4):
            for ks in range(4):
                d = rr("a", Q(qb, ks), 4)
                so = ["s88", "s89", "s90", "s91"][qb]
                self.vmem(f"buffer_load_dwordx4 {d}, v10, s[4:7], {so} offen offset:{64 * ks} nt", ["v10", "s[4:7]", so], [d], "q")
        for qb in range(4):
            a.valu(f"v_mov_b32 v{L(qb)}, 0", [], [f"v{L(qb)}"])
        a.other("s_waitcnt vmcnt(16) lgkmcnt(0)")
        self.stamp(4, True)
        a.other("s_barrier")
        self.stamp(2, True)
        a.salu("s_cmp_lg_u32 s16, 0", ["s16"], ["scc"])
        a.other("s_cbranch_scc1 L_noflag")
        a.salu("s_lshl_b32 s75, 1, s73", ["s73"], ["s75"])
        a.valu("v_mov_b32 v13, s75", ["s75"], ["v13"])
        a.salu("s_mov_b64 s[78:79], exec", [], ["s78", "s79"])
        a.salu("s_mov_b64 exec, 1", [], ["exec"])
        a.add(Inst("buffer_atomic_or v13, v12, s[68:71], 0 offen sc1", "store", ["v13", "v12", "s[68:71]"], []))
        a.salu("s_mov_b64 exec, s[78:79]", ["s78", "s79"], ["exec"])
        a.label("L_noflag")
        for f in range(16):
            d = rr("a", 192 + 4 * f, 4)
            a.add(Inst(f"ds_read_b128 {d}, v3 offset:{1024 * f}", "ds", ["v3"], [d]))
        a.other("s_waitcnt vmcnt(0) lgkmcnt(8)")
        self.stamp(3, True)
        for f in range(8):
            tb, ks = f >> 2, f & 3
            for qb in range(4):
                d = rr("v", S(0, tb, qb), 4)
                self.mfma(d, rr("a", 192 + 4 * f, 4), rr("a", Q(qb, ks), 4), "0" if ks == 0 else d)
        a.nop(8)
        for qb in range(4):
            self.rowmax(0, qb, 150 + qb, 158)
        for qb in range(4):
            for r in range(4):
                a.valu(f"v_sub_f32 v{NEGM(qb) + r}, 0, v{150 + qb}", [f"v{150 + qb}"], [f"v{NEGM(qb) + r}"])
            for tb in range(2):
                for r in range(4):
                    x = S(0, tb, qb) + r
                    a.valu(f"v_sub_f32 v{x}, v{x}, v{150 + qb}", [f"v{x}", f"v{150 + qb}"], [f"v{x}"])
        a.other("s_waitcnt lgkmcnt(0)")
        pi = 0
        for f in range(8):
            tb, ks = f >> 2, f & 3
            for qb in range(4):
                d = rr("v", S(1, tb, qb), 4)
                self.mfma(d, rr("a", 192 + 4 * (8 + f), 4), rr("a", Q(qb, ks), 4),
                          rr("v", NEGM(qb), 4) if ks == 0 else d)
                if qb % 2 == 0:
                    self.sm_exp(0, pi, 0)
                    self.sm_exp(0, pi, 1)
                else:
                    self.sm_add_a(0, pi)
                    self.sm_add_b(0, pi)
                    self.sm_cvt(0, pi)
                    pi += 1
        assert pi == 16
        self.sm_exp(1, 0, 0)
        self.sm_exp(1, 0, 1)
        self.stamp(12, True)
        self.flag_wait()
        self.stamp(13, True)
        for sl in range(3):
            self.dma_addr()
            for hf in range(2):
                a.salu(f"s_add_u32 m0, s20, {sl * 32768 + hf * 4096}", ["s20"], ["m0", "scc"])
                a.nop(1)
                for k in range(4):
                    self.dma_piece("s19" if hf == 0 else "s21", k)
        a.other("s_waitcnt vmcnt(16)")
        a.other("s_barrier")
        for F in range(R - 1):
            self.ds_read_frag(F)
        self.wait_frag(0)
        self.stamp(5, True)
        self.stamp(6)
        if STAMPS:
            a.other("s_waitcnt lgkmcnt(0)")
        a.salu("s_mov_b32 s17, 0", [], ["s17"])
        if "--nochkv" in sys.argv:
            a.salu("s_mov_b64 vcc, 0", [], ["vcc"])
        a.raw(".p2align 6")
        a.label("L_loop")
        for i in range(4):
            self.iteration(i)
        a.salu("s_add_u32 s17, s17, 1", ["s17"], ["s17", "scc"])
        a.salu("s_cmp_lt_u32 s17, 7", ["s17"], ["scc"])
        a.other("s_cbranch_scc1 L_loop")
        self.reads = [F + 24 * 32 for F in self.reads]
        self.iteration(28, dma=True, vm=8)
        self.iteration(29, dma=False, vm=8)
        self.iteration(30, dma=False, vm=0)
        self.iteration(31, dma=False, barrier=False)
        self.stamp(7, True)
        self.stamp(8)
        for qb in range(4):
            self.xlane(L(qb), 158, "v_add_f32")
        for qb in range(4):
            a.trans(f"v_rcp_f32 v{150 + 2 * qb}, v{L(qb)}", [f"v{L(qb)}"], [f"v{150 + 2 * qb}"])
        a.nop(4)
        k = 0
        for half in range(2):
            for qb in range(4):
                so = ["s88", "s89", "s90", "s91"][qb]
                tb_ = 176 + (k % 3) * 24
                k += 1
                pkb = tb_ + 16
                for r in range(4):
                    for c in range(4):
                        t = tb_ + 4 * r + c
                        x = O(4 * half + c, qb) + r
                        a.valu(f"v_accvgpr_read_b32 v{t}, a{x}", [f"a{x}"], [f"v{t}"])
                il = 150 + 2 * qb
                for j in range(8):
                    t = tb_ + 2 * j
                    a.valu(f"v_pk_mul_f32 v[{t}:{t + 1}], v[{t}:{t + 1}], v[{il}:{il + 1}] op_sel:[0,0] op_sel_hi:[1,0]",
                           [f"v[{t}:{t + 1}]", f"v{il}"], [f"v[{t}:{t + 1}]"])
                for j in range(8):
                    self.cvt(pkb + j, tb_ + 2 * j, tb_ + 2 * j + 1)
                for hh in range(2):
                    d = rr("v", pkb + 4 * hh, 4)
                    a.add(Inst(f"buffer_store_dwordx4 {d}, v10, s[12:15], {so} offen offset:{128 * half + 64 * hh}{OSTORE}", "store",
                               [d, "v10", "s[12:15]", so], []))
        self.stamp(9, True)
        self.dump_stamps(14)
        a.label("L_done")
        a.other("s_endpgm")
        for k, cur in self.tramps:
            a.label(f"L_tramp_{k}")
            a.other(f"s_call_b64 s[86:87], L_slow_{cur}", [], ["s86", "s87"])
            a.other(f"s_branch L_back_{k}")
        self.slow(0)
        self.slow(1)
        a.label("L_fb")
        a.salu("s_not_b32 s75, s17", ["s17"], ["s75"])
        a.salu("s_ff1_i32_b32 s74, s75", ["s75"], ["s74"])
        a.salu("s_bitset1_b32 s17, s74", ["s17", "s74"], ["s17"])
        a.other("s_call_b64 s[84:85], L_deq", [], ["s84", "s85"])
        a.nop(4)
        a.salu("s_cmp_lg_u32 s17, -1", ["s17"], ["scc"])
        a.other("s_cbranch_scc1 L_fb")
        a.other("s_waitcnt vmcnt(0)")
        a.other("s_barrier")
        a.other("s_branch L_ready")
        self.fallback_deq()
        n = a.pad_hazards(verbose="-v" in sys.argv)
        print("main: hazard pads inserted:", n, file=sys.stderr)
        return a.text()


HEADER = f"""; Kernarg layout for this problem (80 bytes, ptrs only, base s[0:1]):
; @launch grid=(256,1,1) block=(256,1,1) lds={LDS_BYTES}
.amdgcn_target "amdgcn-amd-amdhsa--gfx950"
.text
"""


def kd(name, vgpr, sgpr, accum):
    return f""".amdhsa_kernel {name}
  .amdhsa_next_free_vgpr {vgpr}
  .amdhsa_next_free_sgpr {sgpr}
  .amdhsa_accum_offset {accum}
  .amdhsa_group_segment_fixed_size 0
  .amdhsa_kernarg_size 80
  .amdhsa_user_sgpr_count 2
  .amdhsa_user_sgpr_kernarg_segment_ptr 1
  .amdhsa_system_sgpr_workgroup_id_x 1
  .amdhsa_float_denorm_mode_32 3
  .amdhsa_float_denorm_mode_16_64 3
.end_amdhsa_kernel
"""


def main():
    out = HEADER
    out += f".globl {MAIN}\n.p2align 8\n.type {MAIN},@function\n"
    out += Main().gen()
    out += '.section .rodata,"a"\n.p2align 6\n'
    out += kd(MAIN, 512, 102, 256)
    path = sys.argv[1] if len(sys.argv) > 1 and not sys.argv[1].startswith("-") else f"cdna_kernels/{NAME}.s"
    open(path, "w").write(out)
    print("wrote", path, len(out), "bytes", file=sys.stderr)


if __name__ == "__main__":
    main()
```

```python
import math
import struct
import sys

from asmlib import Asm, Inst, rr

NAME = "standalone__kv_cache_quant_int4_int2_kv_with_per_channel_or_per_token_scales__prompt"
MAIN = NAME + "_kernel"


def f32bits(x):
    return struct.unpack("<I", struct.pack("<f", x))[0]


CSCALE = (128.0 ** -0.5) * math.log2(math.e)
THR = 65536.0

VWS = 4 << 20
WS_BYTES = 8 << 20
R = 8
LDS_K01 = 131072
LDS_MSG = 147456
LDS_BYTES = 147456 + 256
POLL_LIMIT = 1 if "--forcefb" in sys.argv else 20000

STAMPS = "--stamps" in sys.argv
SLEEP = int(sys.argv[sys.argv.index("--sleep") + 1]) if "--sleep" in sys.argv else 12
WSTORE = " sc1 nt" if "--wnt" in sys.argv else (" sc0 sc1" if "--w01" in sys.argv else (" sc0 sc1 nt" if "--w01nt" in sys.argv else " sc1"))
OSTORE = " nt" if "--ont" in sys.argv else (" sc0 sc1" if "--osc01" in sys.argv else (" sc1 nt" if "--osc1nt" in sys.argv else ("" if "--oplain" in sys.argv else " sc1")))
STAMP_REGS = [92, 94, 96, 98, 100, 24, 26, 28, 30, 32, 34, 36, 38, 40]


def S(buf, tb, qb):
    return 16 + buf * 32 + tb * 16 + qb * 4


def P(buf, qb):
    return 80 + buf * 16 + qb * 4


def NEGM(qb):
    return 112 + qb * 4


def TMP(pair):
    return 128 + 2 * (pair % 4)


def PS(buf, qb):
    return 136 + buf * 4 + qb


def L(qb):
    return 144 + qb


CHK = 148


def O(db, qb):
    return (db * 4 + qb) * 4


def Q(qb, ks):
    return 128 + (qb * 4 + ks) * 4


def RING(F):
    return 192 + 4 * (F % R)


class Main:
    def __init__(self):
        self.a = Asm()
        self.reads = []
        self.nslow = 0
        self.tramps = []
        self.vm = []

    def stamp(self, k, real=False):
        if STAMPS:
            r = STAMP_REGS[k]
            op = "s_memrealtime" if real else "s_memtime"
            self.a.salu(f"{op} s[{r}:{r + 1}]", [], [f"s{r}", f"s{r + 1}"])

    def dump_stamps(self, n):
        if not STAMPS:
            return
        a = self.a
        a.other("s_waitcnt vmcnt(0) lgkmcnt(0)")
        self.stamp(10)
        self.stamp(11, True)
        a.other("s_waitcnt lgkmcnt(0)")
        if "--dbgdump" in sys.argv:
            a.salu("s_mov_b64 exec, 1", [], ["exec"])
            R_ = STAMP_REGS
            a.salu(f"s_sub_u32 s3, s{R_[8]}, s{R_[6]}", [], ["s3"])
            items = [(1, f"s{R_[0]}", True), (2, f"s{R_[5]}", False), (3, f"s{R_[5]}", True), (4, f"s{R_[11]}", False), (5, "s3", False),
                     (6, f"s{R_[13]}", False), (7, f"s{R_[1]}", False), (9, f"s{R_[7]}", False), (10, f"s{R_[7]}", True), (11, f"s{R_[3]}", False), (12, f"s{R_[2]}", False)]
            for dw, sr, inv in items:
                a.valu(f"v_mov_b32 v1, {4 * dw}", [], ["v1"])
                a.valu(f"v_mov_b32 v2, {sr}", [sr], ["v2"])
                if inv:
                    a.valu("v_not_b32 v2, v2", ["v2"], ["v2"])
                a.add(Inst("buffer_atomic_umax v2, v1, s[68:71], 0 offen sc1", "store", ["v2", "v1"], []))
                a.nop(2)
            return
        a.salu("s_mov_b32 s10, 0x10000000", [], ["s10"])
        a.salu("s_lshl_b32 s3, s2, 2", ["s2"], ["s3"])
        a.salu("s_add_u32 s3, s3, s16", ["s3", "s16"], ["s3"])
        a.salu("s_lshl_b32 s3, s3, 6", ["s3"], ["s3"])
        a.salu("s_add_u32 s3, s3, 0x1000000", ["s3"], ["s3"])
        a.valu("v_mov_b32 v1, s3", ["s3"], ["v1"])
        for k in range(n):
            a.valu(f"v_mov_b32 v2, s{STAMP_REGS[k]}", [f"s{STAMP_REGS[k]}"], ["v2"])
            a.add(Inst(f"buffer_store_dword v2, v1, s[8:11], 0 offen offset:{4 * k}", "store", ["v2", "v1"], []))
            a.nop(2)

    def mfma(self, D, A, B, C):
        srcc = [] if C == "0" else [C]
        self.a.add(Inst(f"v_mfma_f32_16x16x32_bf16 {D}, {A}, {B}, {C}", "mfma", [A, B], [D], srcc=srcc, passes=4))

    def vmem(self, text, rd, wr, tag=None, store=False):
        self.a.add(Inst(text, "store" if store else "vmem", rd, wr))
        self.vm.append(tag)

    def wait_vm(self, tag):
        idx = len(self.vm) - 1 - self.vm[::-1].index(tag)
        n = len(self.vm) - 1 - idx
        assert n <= 63
        self.a.other(f"s_waitcnt vmcnt({n})")

    def ds_read_frag(self, F):
        slot = (F // 32) % 4
        n = F % 32
        off = slot * 32768 + n * 1024
        base = "v1" if off < 65536 else "v2"
        off %= 65536
        d = rr("a", RING(F), 4)
        self.a.add(Inst(f"ds_read_b128 {d}, {base} offset:{off}", "ds", [base], [d]))
        self.reads.append(F)

    def wait_frag(self, F):
        idx = self.reads.index(F)
        n = len(self.reads) - 1 - idx
        self.a.other(f"s_waitcnt lgkmcnt({n})")

    def exp(self, dst, src):
        self.a.trans(f"v_exp_f32 v{dst}, v{src}", [f"v{src}"], [f"v{dst}"])

    def add(self, dst, x, y):
        self.a.valu(f"v_add_f32 v{dst}, v{x}, v{y}", [f"v{x}", f"v{y}"], [f"v{dst}"])

    def cvt(self, dst, x, y):
        self.a.valu(f"v_cvt_pk_bf16_f32 v{dst}, v{x}, v{y}", [f"v{x}", f"v{y}"], [f"v{dst}"])

    @staticmethod
    def pair_info(pi):
        return pi >> 3, (pi >> 1) & 3, pi & 1

    def sm_exp(self, buf, pi, which):
        tb, qb, hf = self.pair_info(pi)
        self.exp(TMP(pi) + which, S(buf, tb, qb) + 2 * hf + which)

    def sm_add_a(self, buf, pi):
        tb, qb, hf = self.pair_info(pi)
        if tb == 0 and hf == 0:
            return False
        self.add(PS(buf, qb), PS(buf, qb), TMP(pi))
        return True

    def sm_add_b(self, buf, pi):
        tb, qb, hf = self.pair_info(pi)
        if tb == 0 and hf == 0:
            self.add(PS(buf, qb), TMP(pi), TMP(pi) + 1)
        else:
            self.add(PS(buf, qb), PS(buf, qb), TMP(pi) + 1)

    def sm_cvt(self, buf, pi):
        tb, qb, hf = self.pair_info(pi)
        self.cvt(P(buf, qb) + 2 * tb + hf, TMP(pi), TMP(pi) + 1)

    def cycle(self, u, F0, has_qk=True, has_sm=True, has_next=True, extra=None):
        a = self.a
        cur = (u + 1) % 2
        nxt = u % 2
        extra = extra or {}
        lacc_q = [0, 1, 2, 3]
        chk = has_sm and "--nochk" not in sys.argv
        for g in range(16):
            F = F0 + g
            phaseA = g < 8
            do_mfma = phaseA or has_qk
            if g <= 14:
                pb, pi = cur, g + 1
                pvalid = has_sm
            else:
                pb, pi = nxt, 0
                pvalid = has_next
            qb_, qi = cur, g
            qvalid = has_sm
            for m in range(4):
                if do_mfma:
                    fr = rr("a", RING(F), 4)
                    if phaseA:
                        d = rr("a", O(g, m), 4)
                        self.mfma(d, fr, rr("v", P(nxt, m), 4), d)
                    else:
                        tb, ks = (g - 8) >> 2, (g - 8) & 3
                        d = rr("v", S(nxt, tb, m), 4)
                        c = rr("v", NEGM(m), 4) if ks == 0 else d
                        self.mfma(d, fr, rr("a", Q(m, ks), 4), c)
                for fn in extra.get((g, m), []):
                    fn()
                if m == 0:
                    Fn = F + R - 1
                    if self.frag_needed(Fn):
                        self.ds_read_frag(Fn)
                    if qvalid:
                        self.sm_add_b(qb_, qi)
                elif m == 1:
                    if pvalid:
                        self.sm_exp(pb, pi, 0)
                    if g == 0 and lacc_q:
                        q = lacc_q.pop(0)
                        self.add(L(q), L(q), PS(nxt, q))
                    if g == 14 and chk and "--nochkv" not in sys.argv:
                        a.valu(f"v_max3_f32 v{CHK}, v{PS(cur, 0)}, v{PS(cur, 1)}, v{PS(cur, 2)}",
                               [f"v{PS(cur, 0)}", f"v{PS(cur, 1)}", f"v{PS(cur, 2)}"], [f"v{CHK}"])
                    if g == 15 and chk and "--nochkv" not in sys.argv:
                        a.valu(f"v_max_f32 v{CHK}, v{CHK}, v{PS(cur, 3)}", [f"v{CHK}", f"v{PS(cur, 3)}"], [f"v{CHK}"])
                elif m == 2:
                    if qvalid:
                        self.sm_cvt(qb_, qi)
                    did = self.sm_add_a(pb, pi) if pvalid else False
                    if not did:
                        if g == 15:
                            if chk and "--nochkv" not in sys.argv:
                                a.valu(f"v_cmp_lt_f32 vcc, s18, v{CHK}", ["s18", f"v{CHK}"], ["vcc"])
                        elif lacc_q:
                            q = lacc_q.pop(0)
                            self.add(L(q), L(q), PS(nxt, q))
                else:
                    Fw = F + 1
                    if Fw in self.reads and self.frag_needed(Fw):
                        self.wait_frag(Fw)
                    if pvalid:
                        self.sm_exp(pb, pi, 1)
                    if g == 15 and chk and "--nochkb" not in sys.argv:
                        k = self.nslow
                        self.nslow += 1
                        a.other(f"s_cbranch_vccnz L_tramp_{k}", ["vcc"])
                        a.label(f"L_back_{k}")
                        self.tramps.append((k, cur))
        assert not lacc_q

    def frag_needed(self, F):
        if F >= 32 * 32:
            return False
        if F // 32 == 31 and ((F % 32) >> 3) in (1, 3):
            return False
        return True

    def dma_piece(self, so, k):
        self.a.add(Inst(f"buffer_load_dwordx4 v1, s[8:11], {so} offen offset:{1024 * (k & 3)} sc1 lds", "vmem",
                        ["v1", "s[8:11]", so, "m0"], []))

    def dma_addr(self):
        a = self.a
        a.salu("s_add_u32 s19, s23, s22", ["s23", "s22"], ["s19", "scc"])
        a.salu("s_add_u32 s21, s19, 4096", ["s19"], ["s21", "scc"])
        a.salu("s_add_u32 s22, s22, 16384", ["s22"], ["s22", "scc"])
        a.salu("s_and_b32 s22, s22, 0x7ffff", ["s22"], ["s22", "scc"])

    def flag_wait(self):
        a = self.a
        a.salu("s_cmp_lg_u32 s16, 0", ["s16"], ["scc"])
        a.other("s_cbranch_scc1 L_nopoll")
        a.salu("s_mov_b64 s[78:79], exec", [], ["s78", "s79"])
        a.salu("s_mov_b64 exec, 1", [], ["exec"])
        a.salu("s_mov_b32 s77, 0", [], ["s77"])
        a.label("L_poll")
        a.add(Inst("buffer_load_dword v13, v12, s[68:71], 0 offen sc1", "vmem", ["v12", "s[68:71]"], ["v13"]))
        a.other("s_waitcnt vmcnt(0)")
        a.valu("v_readfirstlane_b32 s75, v13", ["v13"], ["s75"])
        a.nop(2)
        a.salu("s_cmp_eq_u32 s75, -1", ["s75"], ["scc"])
        a.other("s_cbranch_scc1 L_polled")
        a.other(f"s_sleep {SLEEP}")
        a.salu("s_add_u32 s77, s77, 1", ["s77"], ["s77"])
        a.salu(f"s_cmp_lt_u32 s77, {POLL_LIMIT}", ["s77"], ["scc"])
        a.other("s_cbranch_scc1 L_poll")
        a.label("L_polled")
        a.add(Inst("ds_write_b32 v14, v13", "ds", ["v14", "v13"], []))
        a.salu("s_mov_b64 exec, s[78:79]", ["s78", "s79"], ["exec"])
        a.other("s_waitcnt lgkmcnt(0)")
        a.label("L_nopoll")
        a.other("s_barrier")
        a.add(Inst("ds_read_b32 v13, v14", "ds", ["v14"], ["v13"]))
        a.other("s_waitcnt lgkmcnt(0)")
        a.valu("v_readfirstlane_b32 s17, v13", ["v13"], ["s17"])
        a.nop(2)
        a.salu("s_cmp_lg_u32 s17, -1", ["s17"], ["scc"])
        a.other("s_cbranch_scc1 L_fb")
        a.label("L_ready")

    def iteration(self, i, dma=True, vm=8, barrier=True, first=False):
        a = self.a
        ex0 = {}
        ex1 = {}
        if "--nodma" in sys.argv and not first:
            dma = False
            vm = 0
        if "--nobar" in sys.argv and not first:
            barrier = False
        if first:
            ex1[(4, 2)] = [self.flag_wait]
        elif barrier:
            def bar():
                a.other(f"s_waitcnt vmcnt({vm})")
                a.other("s_barrier")
            ex1[(4, 2)] = [bar]
        if dma:
            slots = [2, 3] if first else [(i + 3) % 4]
            sites = [(g, m) for g in range(5, 13) for m in ((1, 3) if first else (1,))]
            n = 0
            for dslot in slots:
                for k in range(8):
                    g, m = sites[n]
                    n += 1
                    fns = []
                    if k == 0:
                        fns.append(self.dma_addr)
                        fns.append(lambda dslot=dslot: a.salu(f"s_add_u32 m0, s20, {dslot * 32768}", ["s20"], ["m0", "scc"]))
                    if k == 4:
                        fns.append(lambda dslot=dslot: a.salu(f"s_add_u32 m0, s20, {dslot * 32768 + 4096}", ["s20"], ["m0", "scc"]))
                    ex1.setdefault((g, m - 1), []).extend(fns)
                    so = "s19" if k < 4 else "s21"
                    ex1.setdefault((g, m), []).append(lambda so=so, k=k: self.dma_piece(so, k))
        u0 = 2 * i
        last = i == 31
        self.cycle(u0, 32 * i, has_qk=not last, has_sm=True, has_next=not last, extra=ex0)
        self.cycle(u0 + 1, 32 * i + 16, has_qk=not last, has_sm=not last, has_next=not last, extra=ex1)

    def rowmax(self, buf, qb, dst, t):
        a = self.a
        s0, s1 = S(buf, 0, qb), S(buf, 1, qb)
        a.valu(f"v_max3_f32 v{dst}, v{s0}, v{s0 + 1}, v{s0 + 2}", [f"v{s0}", f"v{s0 + 1}", f"v{s0 + 2}"], [f"v{dst}"])
        a.valu(f"v_max3_f32 v{dst}, v{dst}, v{s0 + 3}, v{s1}", [f"v{dst}", f"v{s0 + 3}", f"v{s1}"], [f"v{dst}"])
        a.valu(f"v_max3_f32 v{dst}, v{dst}, v{s1 + 1}, v{s1 + 2}", [f"v{dst}", f"v{s1 + 1}", f"v{s1 + 2}"], [f"v{dst}"])
        a.valu(f"v_max_f32 v{dst}, v{dst}, v{s1 + 3}", [f"v{dst}", f"v{s1 + 3}"], [f"v{dst}"])
        self.xlane(dst, t, "v_max_f32")

    def xlane(self, dst, t, op):
        a = self.a
        for sw in ("v_permlane16_swap_b32", "v_permlane32_swap_b32"):
            a.valu(f"v_mov_b32 v{t}, v{dst}", [f"v{dst}"], [f"v{t}"])
            a.add(Inst(f"{sw} v{dst}, v{t}", "perm", [f"v{dst}", f"v{t}"], [f"v{dst}", f"v{t}"]))
            a.valu(f"{op} v{dst}, v{dst}, v{t}", [f"v{dst}", f"v{t}"], [f"v{dst}"])

    def slow(self, cur):
        a = self.a
        nxt = 1 - cur
        a.label(f"L_slow_{cur}")
        a.nop(16)
        DL, FF, T0 = 150, 154, 158
        for qb in range(4):
            self.rowmax(cur, qb, DL + qb, T0)
            a.valu(f"v_ceil_f32 v{DL + qb}, v{DL + qb}", [f"v{DL + qb}"], [f"v{DL + qb}"])
            a.valu(f"v_max_f32 v{DL + qb}, 0, v{DL + qb}", [f"v{DL + qb}"], [f"v{DL + qb}"])
            a.trans(f"v_exp_f32 v{FF + qb}, -v{DL + qb}", [f"v{DL + qb}"], [f"v{FF + qb}"])
        for qb in range(4):
            d, f = DL + qb, FF + qb
            for r in range(4):
                x = NEGM(qb) + r
                a.valu(f"v_sub_f32 v{x}, v{x}, v{d}", [f"v{x}", f"v{d}"], [f"v{x}"])
            for b in (cur, nxt):
                for tb in range(2):
                    for r in range(4):
                        x = S(b, tb, qb) + r
                        a.valu(f"v_sub_f32 v{x}, v{x}, v{d}", [f"v{x}", f"v{d}"], [f"v{x}"])
            a.valu(f"v_mul_f32 v{L(qb)}, v{L(qb)}, v{f}", [f"v{L(qb)}", f"v{f}"], [f"v{L(qb)}"])
            for db in range(8):
                for r in range(4):
                    x = O(db, qb) + r
                    t = 160 + ((db * 4 + r) % 8)
                    a.valu(f"v_accvgpr_read_b32 v{t}, a{x}", [f"a{x}"], [f"v{t}"])
                    a.valu(f"v_mul_f32 v{t}, v{t}, v{f}", [f"v{t}", f"v{f}"], [f"v{t}"])
                    a.valu(f"v_accvgpr_write_b32 a{x}, v{t}", [f"v{t}"], [f"a{x}"])
        for pi in range(16):
            self.sm_exp(cur, pi, 0)
            self.sm_exp(cur, pi, 1)
            self.sm_add_a(cur, pi)
            self.sm_add_b(cur, pi)
            self.sm_cvt(cur, pi)
        self.sm_exp(nxt, 0, 0)
        self.sm_exp(nxt, 0, 1)
        a.nop(4)
        a.other("s_setpc_b64 s[86:87]", ["s86", "s87"])

    def unpack(self, src, dst):
        a = self.a
        for k in range(4):
            a.valu(f"v_lshlrev_b32 v{dst + 2 * k}, 16, v{src + k}", [f"v{src + k}"], [f"v{dst + 2 * k}"])
            a.valu(f"v_and_b32 v{dst + 2 * k + 1}, 0xffff0000, v{src + k}", [f"v{src + k}"], [f"v{dst + 2 * k + 1}"])

    def rnd(self, x0, T):
        a = self.a
        for k in range(4):
            self.cvt(T + k, x0 + 2 * k, x0 + 2 * k + 1)
        for k in range(4):
            a.valu(f"v_lshlrev_b32 v{x0 + 2 * k}, 16, v{T + k}", [f"v{T + k}"], [f"v{x0 + 2 * k}"])
            a.valu(f"v_and_b32 v{x0 + 2 * k + 1}, 0xffff0000, v{T + k}", [f"v{T + k}"], [f"v{x0 + 2 * k + 1}"])

    def pk(self, op, x, y, bcast, neg=False):
        mods = ""
        if bcast:
            ye = y & ~1
            sel = y & 1
            mods += f" op_sel:[0,{sel}] op_sel_hi:[1,{sel}]"
            ys = f"v[{ye}:{ye + 1}]"
        else:
            ys = f"v[{y}:{y + 1}]"
        if neg:
            mods += " neg_lo:[0,1] neg_hi:[0,1]"
        self.a.valu(f"{op} v[{x}:{x + 1}], v[{x}:{x + 1}], {ys}{mods}", [f"v[{x}:{x + 1}]", ys], [f"v[{x}:{x + 1}]"])

    def tile_sregs(self, tile_s):
        a = self.a
        a.salu("s_lshl_b32 s75, s72, 11", ["s72"], ["s75"])
        a.salu(f"s_lshl_b32 s76, {tile_s}, 6", [tile_s], ["s76"])
        a.salu("s_add_u32 s75, s75, s76", ["s75", "s76"], ["s75"])
        a.salu("s_lshl_b32 s76, s72, 5", ["s72"], ["s76"])
        a.salu(f"s_add_u32 s76, s76, {tile_s}", ["s76", tile_s], ["s76"])
        a.salu("s_lshl_b32 s76, s76, 8", ["s76"], ["s76"])
        a.salu("s_lshl_b32 s77, s16, 6", ["s16"], ["s77"])
        a.salu("s_add_u32 s76, s76, s77", ["s76", "s77"], ["s76"])
        a.salu("s_lshr_b32 s77, s16, 1", ["s16"], ["s77"])
        a.salu("s_lshl_b32 s77, s77, 5", ["s77"], ["s77"])
        a.salu("s_add_u32 s77, s77, s75", ["s77", "s75"], ["s77"])
        a.salu("s_lshl_b32 s79, s77, 9", ["s77"], ["s79"])
        a.salu("s_lshl_b32 s77, s77, 1", ["s77"], ["s77"])
        a.salu("s_and_b32 s78, s16, 1", ["s16"], ["s78"])
        a.salu("s_lshl_b32 s78, s78, 8", ["s78"], ["s78"])
        a.salu("s_add_u32 s79, s79, s78", ["s79", "s78"], ["s79"])
        a.salu("s_lshl_b32 s78, s75, 9", ["s75"], ["s78"])
        a.salu("s_lshl_b32 s80, s16, 7", ["s16"], ["s80"])
        a.salu("s_add_u32 s78, s78, s80", ["s78", "s80"], ["s78"])

    def load_k(self, KX, KP, tag, pol=" nt"):
        a = self.a
        self.vmem(f"buffer_load_dwordx4 v[{KP}:{KP + 3}], v8, s[52:55], s76 offen", ["v8", "s[52:55]", "s76"], [f"v[{KP}:{KP + 3}]"], tag + "s")
        self.vmem(f"buffer_load_dwordx4 v[{KP + 4}:{KP + 7}], v8, s[56:59], s76 offen", ["v8", "s[56:59]", "s76"], [f"v[{KP + 4}:{KP + 7}]"], tag + "s")
        for e in range(4):
            for hh in range(2):
                d = f"v[{KX + 8 * e + 4 * hh}:{KX + 8 * e + 4 * hh + 3}]"
                self.vmem(f"buffer_load_dwordx4 {d}, v6, s[44:47], s78 offen offset:{16 * hh}{pol}", ["v6", "s[44:47]", "s78"], [d], f"{tag}{e}")
            if e < 3:
                a.salu("s_add_u32 s78, s78, 8192", ["s78"], ["s78"])

    def load_v(self, VX, VP, tag, pol=" nt"):
        a = self.a
        for (p, srd) in ((VP, "s[60:63]"), (VP + 4, "s[64:67]")):
            for hh in range(2):
                self.vmem(f"buffer_load_dwordx2 v[{p + 2 * hh}:{p + 2 * hh + 1}], v9, {srd}, s77 offen offset:{32 * hh}",
                          ["v9", srd, "s77"], [f"v[{p + 2 * hh}:{p + 2 * hh + 1}]"], tag + "s")
        for j in range(8):
            if j == 4:
                a.salu("s_add_u32 s79, s79, 8192", ["s79"], ["s79"])
            d = f"v[{VX + 4 * j}:{VX + 4 * j + 3}]"
            self.vmem(f"buffer_load_dwordx4 {d}, v7, s[48:51], s79 offen offset:{512 * (j & 3)}{pol}", ["v7", "s[48:51]", "s79"], [d], tag)

    def proc_k(self, KX, KP, tag, SC, T, CS, outs, sink):
        a = self.a
        self.wait_vm(tag + "s")
        self.unpack(KP, SC)
        self.unpack(KP + 4, SC + 8)
        for e in range(4):
            x0 = KX + 8 * e
            self.wait_vm(f"{tag}{e}")
            for k in range(8):
                a.valu(f"v_cvt_f32_i32 v{x0 + k}, v{x0 + k}", [f"v{x0 + k}"], [f"v{x0 + k}"])
            self.rnd(x0, T)
            for k in range(4):
                self.pk("v_pk_add_f32", x0 + 2 * k, SC + 8 + 2 * k, False, neg=True)
            self.rnd(x0, T)
            for k in range(4):
                self.pk("v_pk_mul_f32", x0 + 2 * k, SC + 2 * k, False)
            self.rnd(x0, T)
            for k in range(4):
                self.pk("v_pk_mul_f32", x0 + 2 * k, CS, False)
            o = outs[self.outi % len(outs)]
            self.outi += 1
            for k in range(4):
                self.cvt(o + k, x0 + 2 * k, x0 + 2 * k + 1)
            sink(e, o)

    def proc_v(self, VX, VP, tag, SC, T, outs, sink):
        a = self.a
        self.wait_vm(tag + "s")
        self.unpack(VP, SC)
        self.unpack(VP + 4, SC + 8)
        self.wait_vm(tag)
        for j2 in range(4):
            x0 = VX + 8 * j2
            for k in range(8):
                a.valu(f"v_cvt_f32_i32 v{x0 + k}, v{x0 + k}", [f"v{x0 + k}"], [f"v{x0 + k}"])
            self.rnd(x0, T)
            for k in range(4):
                self.pk("v_pk_add_f32", x0 + 2 * k, SC + 8 + 2 * j2 + (k >> 1), True, neg=True)
            self.rnd(x0, T)
            for k in range(4):
                self.pk("v_pk_mul_f32", x0 + 2 * k, SC + 2 * j2 + (k >> 1), True)
        for c in range(4):
            o = outs[self.outi % len(outs)]
            self.outi += 1
            for k in range(4):
                self.cvt(o + k, VX + 4 * (2 * k) + c, VX + 4 * (2 * k + 1) + c)
            sink(c, o)

    def gdest(self, tile_s):
        a = self.a
        a.salu("s_lshl_b32 s81, s72, 19", ["s72"], ["s81"])
        a.salu(f"s_lshl_b32 s80, {tile_s}, 14", [tile_s], ["s80"])
        a.salu("s_add_u32 s81, s81, s80", ["s81", "s80"], ["s81"])
        a.salu("s_lshl_b32 s80, s16, 12", ["s16"], ["s80"])
        a.salu("s_add_u32 s82, s81, s80", ["s81", "s80"], ["s82"])
        a.salu(f"s_add_u32 s82, s82, {VWS}", ["s82"], ["s82"])
        a.salu("s_lshl_b32 s80, s16, 10", ["s16"], ["s80"])
        a.salu("s_add_u32 s81, s81, s80", ["s81", "s80"], ["s81"])

    def gstore_k(self, e, o):
        self.vmem(f"buffer_store_dwordx4 v[{o}:{o + 3}], v1, s[8:11], s81 offen{WSTORE}", [f"v[{o}:{o + 3}]", "v1", "s[8:11]", "s81"], [], "st", store=True)
        if e < 3:
            self.a.salu("s_add_u32 s81, s81, 4096", ["s81"], ["s81"])

    def gstore_v(self, c, o):
        self.vmem(f"buffer_store_dwordx4 v[{o}:{o + 3}], v1, s[8:11], s82 offen offset:{1024 * c}{WSTORE}",
                  [f"v[{o}:{o + 3}]", "v1", "s[8:11]", "s82"], [], "st", store=True)

    def lds_write(self, addr, off, o):
        self.a.add(Inst(f"ds_write_b128 {addr}, v[{o}:{o + 3}] offset:{off}", "store", [addr, f"v[{o}:{o + 3}]"], []))

    def fallback_deq(self):
        a = self.a
        a.label("L_deq")
        self.vm = []
        self.outi = 0
        X, PK_, SC, T, CS, OUTS = 168, 200, 208, 224, 228, [232, 236, 240, 244]
        a.valu(f"v_mov_b32 v{CS}, 0x{f32bits(CSCALE):08x}", [], [f"v{CS}"])
        a.valu(f"v_mov_b32 v{CS + 1}, 0x{f32bits(CSCALE):08x}", [], [f"v{CS + 1}"])
        self.tile_sregs("s74")
        self.gdest("s74")
        self.load_k(X, PK_, "k")
        self.proc_k(X, PK_, "k", SC, T, CS, OUTS, self.gstore_k)
        a.other("s_waitcnt vmcnt(0)")
        self.load_v(X, PK_, "v")
        self.proc_v(X, PK_, "v", SC, T, OUTS, self.gstore_v)
        a.other("s_waitcnt vmcnt(0)")
        a.other("s_setpc_b64 s[84:85]", ["s84", "s85"])

    def gen(self):
        a = self.a
        a.label(MAIN)
        a.salu("s_cmp_ge_u32 s2, 256", ["s2"], ["scc"])
        a.other("s_cbranch_scc1 L_done")
        self.stamp(0, True)
        a.salu("s_load_dwordx16 s[24:39], s[0:1], 0", [], ["s[24:39]"])
        a.salu("s_load_dwordx4 s[40:43], s[0:1], 64", [], ["s[40:43]"])
        a.valu("v_lshrrev_b32 v3, 6, v0", ["v0"], ["v3"])
        a.valu("v_and_b32 v0, 63, v0", ["v0"], ["v0"])
        a.valu("v_readfirstlane_b32 s16, v3", ["v3"], ["s16"])
        a.valu("v_lshlrev_b32 v1, 4, v0", ["v0"], ["v1"])
        a.valu("v_add_u32 v2, 0x10000, v1", ["v1"], ["v2"])
        a.valu(f"v_add_u32 v3, {LDS_K01}, v1", ["v1"], ["v3"])
        a.valu("v_and_b32 v4, 15, v0", ["v0"], ["v4"])
        a.valu("v_lshrrev_b32 v5, 4, v0", ["v0"], ["v5"])
        a.valu("v_lshlrev_b32 v6, 9, v4", ["v4"], ["v6"])
        a.valu("v_lshl_add_u32 v6, v5, 5, v6", ["v5", "v6"], ["v6"])
        a.valu("v_and_b32 v7, 2, v4", ["v4"], ["v7"])
        a.valu("v_lshlrev_b32 v7, 2, v7", ["v7"], ["v7"])
        a.valu("v_lshrrev_b32 v8, 2, v4", ["v4"], ["v8"])
        a.valu("v_lshl_add_u32 v7, v8, 1, v7", ["v8", "v7"], ["v7"])
        a.valu("v_and_b32 v8, 1, v4", ["v4"], ["v8"])
        a.valu("v_add_u32 v7, v7, v8", ["v7", "v8"], ["v7"])
        a.valu("v_lshlrev_b32 v7, 4, v7", ["v7"], ["v7"])
        a.valu("v_lshl_add_u32 v7, v5, 11, v7", ["v5", "v7"], ["v7"])
        a.valu("v_lshlrev_b32 v8, 4, v5", ["v5"], ["v8"])
        a.valu("v_lshlrev_b32 v9, 3, v5", ["v5"], ["v9"])
        a.valu("v_lshlrev_b32 v10, 8, v4", ["v4"], ["v10"])
        a.valu("v_lshl_add_u32 v10, v5, 4, v10", ["v5", "v10"], ["v10"])
        a.valu(f"v_mov_b32 v14, {LDS_MSG}", [], ["v14"])
        a.salu("s_and_b32 s72, s2, 7", ["s2"], ["s72"])
        a.salu("s_lshr_b32 s73, s2, 3", ["s2"], ["s73"])
        a.salu("s_and_b32 s75, s73, 3", ["s73"], ["s75"])
        a.salu("s_lshl_b32 s88, s72, 2", ["s72"], ["s88"])
        a.salu("s_add_u32 s88, s88, s75", ["s88", "s75"], ["s88"])
        a.salu("s_lshr_b32 s75, s73, 2", ["s73"], ["s75"])
        a.salu("s_lshl_b32 s88, s88, 19", ["s88"], ["s88"])
        a.salu("s_lshl_b32 s75, s75, 16", ["s75"], ["s75"])
        a.salu("s_add_u32 s88, s88, s75", ["s88", "s75"], ["s88"])
        a.salu("s_lshl_b32 s75, s16, 14", ["s16"], ["s75"])
        a.salu("s_add_u32 s88, s88, s75", ["s88", "s75"], ["s88"])
        a.salu("s_add_u32 s89, s88, 4096", ["s88"], ["s89"])
        a.salu("s_add_u32 s90, s88, 8192", ["s88"], ["s90"])
        a.salu("s_add_u32 s91, s88, 12288", ["s88"], ["s91"])
        a.salu(f"s_mov_b32 s18, 0x{f32bits(THR):08x}", [], ["s18"])
        a.salu("s_lshl_b32 s20, s16, 13", ["s16"], ["s20"])
        a.salu("s_lshl_b32 s23, s72, 19", ["s72"], ["s23"])
        a.salu("s_and_b32 s75, s16, 1", ["s16"], ["s75"])
        a.salu("s_lshr_b32 s76, s16, 1", ["s16"], ["s76"])
        a.salu("s_lshl_b32 s77, s75, 1", ["s75"], ["s77"])
        a.salu("s_add_u32 s76, s76, s77", ["s76", "s77"], ["s76"])
        a.salu("s_lshl_b32 s77, s73, 1", ["s73"], ["s77"])
        a.salu("s_add_u32 s76, s76, s77", ["s76", "s77"], ["s76"])
        a.salu("s_lshl_b32 s22, s76, 13", ["s76"], ["s22"])
        a.salu("s_and_b32 s22, s22, 0x7ffff", ["s22"], ["s22"])
        a.salu("s_cmp_eq_u32 s75, 1", ["s75"], ["scc"])
        a.salu(f"s_cselect_b32 s76, 0, {VWS}", ["scc"], ["s76"])
        a.salu("s_add_u32 s23, s23, s76", ["s23", "s76"], ["s23"])
        a.salu("s_add_u32 s74, s73, 1", ["s73"], ["s74"])
        a.salu("s_and_b32 s74, s74, 31", ["s74"], ["s74"])
        a.salu("s_add_u32 s83, s73, 2", ["s73"], ["s83"])
        a.salu("s_and_b32 s83, s83, 31", ["s83"], ["s83"])
        a.salu("s_lshl_b32 s75, s16, 10", ["s16"], ["s75"])
        a.valu("v_add_u32 v11, s75, v1", ["s75", "v1"], ["v11"])
        a.valu("v_add_u32 v13, s75, v3", ["s75", "v3"], ["v13"])
        a.salu("s_lshr_b32 s75, s16, 1", ["s16"], ["s75"])
        a.salu("s_lshl_b32 s75, s75, 14", ["s75"], ["s75"])
        a.salu("s_and_b32 s76, s16, 1", ["s16"], ["s76"])
        a.salu("s_lshl_b32 s76, s76, 12", ["s76"], ["s76"])
        a.salu("s_add_u32 s75, s75, s76", ["s75", "s76"], ["s75"])
        a.valu("v_add_u32 v15, s75, v1", ["s75", "v1"], ["v15"])
        a.salu("s_lshl_b32 s76, s72, 5", ["s72"], ["s76"])
        a.valu("v_mov_b32 v12, s76", ["s76"], ["v12"])
        a.other("s_waitcnt lgkmcnt(0)")
        for base, lo, nb in ((4, 24, 16777216), (8, 42, WS_BYTES), (12, 38, 16777216), (44, 26, 8388608), (48, 28, 8388608),
                             (52, 30, 65536), (56, 32, 65536), (60, 34, 32768), (64, 36, 32768), (68, 40, 256)):
            a.salu(f"s_mov_b32 s{base}, s{lo}", [], [f"s{base}"])
            a.salu(f"s_mov_b32 s{base + 1}, s{lo + 1}", [], [f"s{base + 1}"])
            a.salu(f"s_mov_b32 s{base + 2}, {nb}", [], [f"s{base + 2}"])
            a.salu(f"s_mov_b32 s{base + 3}, 0x00020000", [], [f"s{base + 3}"])
        K0, V0 = 16, 48
        KP0, VP0 = 176, 184
        SC, T, CS, OUTS = 216, 232, 240, [244, 248, 252]
        self.vm = []
        self.outi = 0
        self.tile_sregs("s73")
        self.load_k(K0, KP0, "k0")
        self.load_v(V0, VP0, "v0")
        self.gdest("s73")
        a.valu(f"v_mov_b32 v{CS}, 0x{f32bits(CSCALE):08x}", [], [f"v{CS}"])
        a.valu(f"v_mov_b32 v{CS + 1}, 0x{f32bits(CSCALE):08x}", [], [f"v{CS + 1}"])
        for r in range(128):
            a.valu(f"v_accvgpr_write_b32 a{r}, 0", [], [f"a{r}"])

        def sink_k0(e, o):
            self.gstore_k(e, o)
            self.lds_write("v13", 4096 * e, o)

        self.proc_k(K0, KP0, "k0", SC, T, CS, OUTS, sink_k0)
        self.proc_v(V0, VP0, "v0", SC, T, OUTS, self.gstore_v)
        self.stamp(1, True)
        for qb in range(4):
            for ks in range(4):
                d = rr("a", Q(qb, ks), 4)
                so = ["s88", "s89", "s90", "s91"][qb]
                self.vmem(f"buffer_load_dwordx4 {d}, v10, s[4:7], {so} offen offset:{64 * ks} nt", ["v10", "s[4:7]", so], [d], "q")
        for qb in range(4):
            a.valu(f"v_mov_b32 v{L(qb)}, 0", [], [f"v{L(qb)}"])
        a.other("s_waitcnt vmcnt(16) lgkmcnt(0)")
        self.stamp(4, True)
        a.other("s_barrier")
        self.stamp(2, True)
        a.salu("s_cmp_lg_u32 s16, 0", ["s16"], ["scc"])
        a.other("s_cbranch_scc1 L_noflag")
        a.salu("s_lshl_b32 s75, 1, s73", ["s73"], ["s75"])
        a.valu("v_mov_b32 v13, s75", ["s75"], ["v13"])
        a.salu("s_mov_b64 s[78:79], exec", [], ["s78", "s79"])
        a.salu("s_mov_b64 exec, 1", [], ["exec"])
        a.add(Inst("buffer_atomic_or v13, v12, s[68:71], 0 offen sc1", "store", ["v13", "v12", "s[68:71]"], []))
        a.salu("s_mov_b64 exec, s[78:79]", ["s78", "s79"], ["exec"])
        a.label("L_noflag")
        for f in range(16):
            d = rr("a", 192 + 4 * f, 4)
            a.add(Inst(f"ds_read_b128 {d}, v3 offset:{1024 * f}", "ds", ["v3"], [d]))
        a.other("s_waitcnt vmcnt(0) lgkmcnt(8)")
        self.stamp(3, True)
        for f in range(8):
            tb, ks = f >> 2, f & 3
            for qb in range(4):
                d = rr("v", S(0, tb, qb), 4)
                self.mfma(d, rr("a", 192 + 4 * f, 4), rr("a", Q(qb, ks), 4), "0" if ks == 0 else d)
        a.nop(8)
        for qb in range(4):
            self.rowmax(0, qb, 150 + qb, 158)
        for qb in range(4):
            for r in range(4):
                a.valu(f"v_sub_f32 v{NEGM(qb) + r}, 0, v{150 + qb}", [f"v{150 + qb}"], [f"v{NEGM(qb) + r}"])
            for tb in range(2):
                for r in range(4):
                    x = S(0, tb, qb) + r
                    a.valu(f"v_sub_f32 v{x}, v{x}, v{150 + qb}", [f"v{x}", f"v{150 + qb}"], [f"v{x}"])
        a.other("s_waitcnt lgkmcnt(0)")
        pi = 0
        for f in range(8):
            tb, ks = f >> 2, f & 3
            for qb in range(4):
                d = rr("v", S(1, tb, qb), 4)
                self.mfma(d, rr("a", 192 + 4 * (8 + f), 4), rr("a", Q(qb, ks), 4),
                          rr("v", NEGM(qb), 4) if ks == 0 else d)
                if qb % 2 == 0:
                    self.sm_exp(0, pi, 0)
                    self.sm_exp(0, pi, 1)
                else:
                    self.sm_add_a(0, pi)
                    self.sm_add_b(0, pi)
                    self.sm_cvt(0, pi)
                    pi += 1
        assert pi == 16
        self.sm_exp(1, 0, 0)
        self.sm_exp(1, 0, 1)
        self.stamp(12, True)
        self.flag_wait()
        self.stamp(13, True)
        for sl in range(3):
            self.dma_addr()
            for hf in range(2):
                a.salu(f"s_add_u32 m0, s20, {sl * 32768 + hf * 4096}", ["s20"], ["m0", "scc"])
                a.nop(1)
                for k in range(4):
                    self.dma_piece("s19" if hf == 0 else "s21", k)
        a.other("s_waitcnt vmcnt(16)")
        a.other("s_barrier")
        for F in range(R - 1):
            self.ds_read_frag(F)
        self.wait_frag(0)
        self.stamp(5, True)
        self.stamp(6)
        if STAMPS:
            a.other("s_waitcnt lgkmcnt(0)")
        a.salu("s_mov_b32 s17, 0", [], ["s17"])
        if "--nochkv" in sys.argv:
            a.salu("s_mov_b64 vcc, 0", [], ["vcc"])
        a.raw(".p2align 6")
        a.label("L_loop")
        for i in range(4):
            self.iteration(i)
        a.salu("s_add_u32 s17, s17, 1", ["s17"], ["s17", "scc"])
        a.salu("s_cmp_lt_u32 s17, 7", ["s17"], ["scc"])
        a.other("s_cbranch_scc1 L_loop")
        self.reads = [F + 24 * 32 for F in self.reads]
        self.iteration(28, dma=True, vm=8)
        self.iteration(29, dma=False, vm=8)
        self.iteration(30, dma=False, vm=0)
        self.iteration(31, dma=False, barrier=False)
        self.stamp(7, True)
        self.stamp(8)
        for qb in range(4):
            self.xlane(L(qb), 158, "v_add_f32")
        for qb in range(4):
            a.trans(f"v_rcp_f32 v{150 + 2 * qb}, v{L(qb)}", [f"v{L(qb)}"], [f"v{150 + 2 * qb}"])
        a.nop(4)
        k = 0
        for half in range(2):
            for qb in range(4):
                so = ["s88", "s89", "s90", "s91"][qb]
                tb_ = 176 + (k % 3) * 24
                k += 1
                pkb = tb_ + 16
                for r in range(4):
                    for c in range(4):
                        t = tb_ + 4 * r + c
                        x = O(4 * half + c, qb) + r
                        a.valu(f"v_accvgpr_read_b32 v{t}, a{x}", [f"a{x}"], [f"v{t}"])
                il = 150 + 2 * qb
                for j in range(8):
                    t = tb_ + 2 * j
                    a.valu(f"v_pk_mul_f32 v[{t}:{t + 1}], v[{t}:{t + 1}], v[{il}:{il + 1}] op_sel:[0,0] op_sel_hi:[1,0]",
                           [f"v[{t}:{t + 1}]", f"v{il}"], [f"v[{t}:{t + 1}]"])
                for j in range(8):
                    self.cvt(pkb + j, tb_ + 2 * j, tb_ + 2 * j + 1)
                for hh in range(2):
                    d = rr("v", pkb + 4 * hh, 4)
                    a.add(Inst(f"buffer_store_dwordx4 {d}, v10, s[12:15], {so} offen offset:{128 * half + 64 * hh}{OSTORE}", "store",
                               [d, "v10", "s[12:15]", so], []))
        self.stamp(9, True)
        self.dump_stamps(14)
        a.label("L_done")
        a.other("s_endpgm")
        for k, cur in self.tramps:
            a.label(f"L_tramp_{k}")
            a.other(f"s_call_b64 s[86:87], L_slow_{cur}", [], ["s86", "s87"])
            a.other(f"s_branch L_back_{k}")
        self.slow(0)
        self.slow(1)
        a.label("L_fb")
        a.salu("s_not_b32 s75, s17", ["s17"], ["s75"])
        a.salu("s_ff1_i32_b32 s74, s75", ["s75"], ["s74"])
        a.salu("s_bitset1_b32 s17, s74", ["s17", "s74"], ["s17"])
        a.other("s_call_b64 s[84:85], L_deq", [], ["s84", "s85"])
        a.nop(4)
        a.salu("s_cmp_lg_u32 s17, -1", ["s17"], ["scc"])
        a.other("s_cbranch_scc1 L_fb")
        a.other("s_waitcnt vmcnt(0)")
        a.other("s_barrier")
        a.other("s_branch L_ready")
        self.fallback_deq()
        n = a.pad_hazards(verbose="-v" in sys.argv)
        print("main: hazard pads inserted:", n, file=sys.stderr)
        return a.text()


HEADER = f"""; Kernarg layout for this problem (80 bytes, ptrs only, base s[0:1]):
; @launch grid=(256,1,1) block=(256,1,1) lds={LDS_BYTES}
.amdgcn_target "amdgcn-amd-amdhsa--gfx950"
.text
"""


def kd(name, vgpr, sgpr, accum):
    return f""".amdhsa_kernel {name}
  .amdhsa_next_free_vgpr {vgpr}
  .amdhsa_next_free_sgpr {sgpr}
  .amdhsa_accum_offset {accum}
  .amdhsa_group_segment_fixed_size 0
  .amdhsa_kernarg_size 80
  .amdhsa_user_sgpr_count 2
  .amdhsa_user_sgpr_kernarg_segment_ptr 1
  .amdhsa_system_sgpr_workgroup_id_x 1
  .amdhsa_float_denorm_mode_32 3
  .amdhsa_float_denorm_mode_16_64 3
.end_amdhsa_kernel
"""


def main():
    out = HEADER
    out += f".globl {MAIN}\n.p2align 8\n.type {MAIN},@function\n"
    out += Main().gen()
    out += '.section .rodata,"a"\n.p2align 6\n'
    out += kd(MAIN, 512, 102, 256)
    path = sys.argv[1] if len(sys.argv) > 1 and not sys.argv[1].startswith("-") else f"cdna_kernels/{NAME}.s"
    open(path, "w").write(out)
    print("wrote", path, len(out), "bytes", file=sys.stderr)


if __name__ == "__main__":
    main()
```

```python
import math
import struct
import sys

from asmlib import Asm, Inst, rr

NAME = "standalone__kv_cache_quant_int4_int2_kv_with_per_channel_or_per_token_scales__prompt"
MAIN = NAME + "_kernel"


def f32bits(x):
    return struct.unpack("<I", struct.pack("<f", x))[0]


CSCALE = (128.0 ** -0.5) * math.log2(math.e)
THR = 65536.0

VWS = 4 << 20
WS_BYTES = 8 << 20
R = 8
LDS_K01 = 131072
LDS_MSG = 147456
LDS_BYTES = 147456 + 256
POLL_LIMIT = 1 if "--forcefb" in sys.argv else 20000

STAMPS = "--stamps" in sys.argv
QEARLY = "--qearly" in sys.argv
SLEEP = int(sys.argv[sys.argv.index("--sleep") + 1]) if "--sleep" in sys.argv else 12
WSTORE = " sc1 nt" if "--wnt" in sys.argv else (" sc0 sc1" if "--w01" in sys.argv else (" sc0 sc1 nt" if "--w01nt" in sys.argv else " sc1"))
OSTORE = " nt" if "--ont" in sys.argv else (" sc0 sc1" if "--osc01" in sys.argv else (" sc1 nt" if "--osc1nt" in sys.argv else ("" if "--oplain" in sys.argv else " sc1")))
STAMP_REGS = [92, 94, 96, 98, 100, 24, 26, 28, 30, 32, 34, 36, 38, 40]


def S(buf, tb, qb):
    return 16 + buf * 32 + tb * 16 + qb * 4


def P(buf, qb):
    return 80 + buf * 16 + qb * 4


def NEGM(qb):
    return 112 + qb * 4


def TMP(pair):
    return 128 + 2 * (pair % 4)


def PS(buf, qb):
    return 136 + buf * 4 + qb


def L(qb):
    return 144 + qb


CHK = 148


def O(db, qb):
    return (db * 4 + qb) * 4


def Q(qb, ks):
    return 128 + (qb * 4 + ks) * 4


def RING(F):
    return 192 + 4 * (F % R)


class Main:
    def __init__(self):
        self.a = Asm()
        self.reads = []
        self.nslow = 0
        self.tramps = []
        self.vm = []

    def stamp(self, k, real=False):
        if STAMPS:
            r = STAMP_REGS[k]
            op = "s_memrealtime" if real else "s_memtime"
            self.a.salu(f"{op} s[{r}:{r + 1}]", [], [f"s{r}", f"s{r + 1}"])

    def dump_stamps(self, n):
        if not STAMPS:
            return
        a = self.a
        a.other("s_waitcnt vmcnt(0) lgkmcnt(0)")
        self.stamp(10)
        self.stamp(11, True)
        a.other("s_waitcnt lgkmcnt(0)")
        if "--dbgdump" in sys.argv:
            a.salu("s_mov_b64 exec, 1", [], ["exec"])
            R_ = STAMP_REGS
            a.salu(f"s_sub_u32 s3, s{R_[8]}, s{R_[6]}", [], ["s3"])
            items = [(1, f"s{R_[0]}", True), (2, f"s{R_[5]}", False), (3, f"s{R_[5]}", True), (4, f"s{R_[11]}", False), (5, "s3", False),
                     (6, f"s{R_[13]}", False), (7, f"s{R_[1]}", False), (9, f"s{R_[7]}", False), (10, f"s{R_[7]}", True), (11, f"s{R_[3]}", False), (12, f"s{R_[2]}", False)]
            for dw, sr, inv in items:
                a.valu(f"v_mov_b32 v1, {4 * dw}", [], ["v1"])
                a.valu(f"v_mov_b32 v2, {sr}", [sr], ["v2"])
                if inv:
                    a.valu("v_not_b32 v2, v2", ["v2"], ["v2"])
                a.add(Inst("buffer_atomic_umax v2, v1, s[68:71], 0 offen sc1", "store", ["v2", "v1"], []))
                a.nop(2)
            return
        a.salu("s_mov_b32 s10, 0x10000000", [], ["s10"])
        a.salu("s_lshl_b32 s3, s2, 2", ["s2"], ["s3"])
        a.salu("s_add_u32 s3, s3, s16", ["s3", "s16"], ["s3"])
        a.salu("s_lshl_b32 s3, s3, 6", ["s3"], ["s3"])
        a.salu("s_add_u32 s3, s3, 0x1000000", ["s3"], ["s3"])
        a.valu("v_mov_b32 v1, s3", ["s3"], ["v1"])
        for k in range(n):
            a.valu(f"v_mov_b32 v2, s{STAMP_REGS[k]}", [f"s{STAMP_REGS[k]}"], ["v2"])
            a.add(Inst(f"buffer_store_dword v2, v1, s[8:11], 0 offen offset:{4 * k}", "store", ["v2", "v1"], []))
            a.nop(2)

    def mfma(self, D, A, B, C):
        srcc = [] if C == "0" else [C]
        self.a.add(Inst(f"v_mfma_f32_16x16x32_bf16 {D}, {A}, {B}, {C}", "mfma", [A, B], [D], srcc=srcc, passes=4))

    def vmem(self, text, rd, wr, tag=None, store=False):
        self.a.add(Inst(text, "store" if store else "vmem", rd, wr))
        self.vm.append(tag)

    def wait_vm(self, tag):
        idx = len(self.vm) - 1 - self.vm[::-1].index(tag)
        n = len(self.vm) - 1 - idx
        assert n <= 63
        self.a.other(f"s_waitcnt vmcnt({n})")

    def ds_read_frag(self, F):
        slot = (F // 32) % 4
        n = F % 32
        off = slot * 32768 + n * 1024
        base = "v1" if off < 65536 else "v2"
        off %= 65536
        d = rr("a", RING(F), 4)
        self.a.add(Inst(f"ds_read_b128 {d}, {base} offset:{off}", "ds", [base], [d]))
        self.reads.append(F)

    def wait_frag(self, F):
        idx = self.reads.index(F)
        n = len(self.reads) - 1 - idx
        self.a.other(f"s_waitcnt lgkmcnt({n})")

    def exp(self, dst, src):
        self.a.trans(f"v_exp_f32 v{dst}, v{src}", [f"v{src}"], [f"v{dst}"])

    def add(self, dst, x, y):
        self.a.valu(f"v_add_f32 v{dst}, v{x}, v{y}", [f"v{x}", f"v{y}"], [f"v{dst}"])

    def cvt(self, dst, x, y):
        self.a.valu(f"v_cvt_pk_bf16_f32 v{dst}, v{x}, v{y}", [f"v{x}", f"v{y}"], [f"v{dst}"])

    @staticmethod
    def pair_info(pi):
        return pi >> 3, (pi >> 1) & 3, pi & 1

    def sm_exp(self, buf, pi, which):
        tb, qb, hf = self.pair_info(pi)
        self.exp(TMP(pi) + which, S(buf, tb, qb) + 2 * hf + which)

    def sm_add_a(self, buf, pi):
        tb, qb, hf = self.pair_info(pi)
        if tb == 0 and hf == 0:
            return False
        self.add(PS(buf, qb), PS(buf, qb), TMP(pi))
        return True

    def sm_add_b(self, buf, pi):
        tb, qb, hf = self.pair_info(pi)
        if tb == 0 and hf == 0:
            self.add(PS(buf, qb), TMP(pi), TMP(pi) + 1)
        else:
            self.add(PS(buf, qb), PS(buf, qb), TMP(pi) + 1)

    def sm_cvt(self, buf, pi):
        tb, qb, hf = self.pair_info(pi)
        self.cvt(P(buf, qb) + 2 * tb + hf, TMP(pi), TMP(pi) + 1)

    def cycle(self, u, F0, has_qk=True, has_sm=True, has_next=True, extra=None):
        a = self.a
        cur = (u + 1) % 2
        nxt = u % 2
        extra = extra or {}
        lacc_q = [0, 1, 2, 3]
        chk = has_sm and "--nochk" not in sys.argv
        for g in range(16):
            F = F0 + g
            phaseA = g < 8
            do_mfma = phaseA or has_qk
            if g <= 14:
                pb, pi = cur, g + 1
                pvalid = has_sm
            else:
                pb, pi = nxt, 0
                pvalid = has_next
            qb_, qi = cur, g
            qvalid = has_sm
            for m in range(4):
                if do_mfma:
                    fr = rr("a", RING(F), 4)
                    if phaseA:
                        d = rr("a", O(g, m), 4)
                        self.mfma(d, fr, rr("v", P(nxt, m), 4), d)
                    else:
                        tb, ks = (g - 8) >> 2, (g - 8) & 3
                        d = rr("v", S(nxt, tb, m), 4)
                        c = rr("v", NEGM(m), 4) if ks == 0 else d
                        self.mfma(d, fr, rr("a", Q(m, ks), 4), c)
                for fn in extra.get((g, m), []):
                    fn()
                if m == 0:
                    Fn = F + R - 1
                    if self.frag_needed(Fn):
                        self.ds_read_frag(Fn)
                    if qvalid:
                        self.sm_add_b(qb_, qi)
                elif m == 1:
                    if pvalid:
                        self.sm_exp(pb, pi, 0)
                    if g == 0 and lacc_q:
                        q = lacc_q.pop(0)
                        self.add(L(q), L(q), PS(nxt, q))
                    if g == 14 and chk and "--nochkv" not in sys.argv:
                        a.valu(f"v_max3_f32 v{CHK}, v{PS(cur, 0)}, v{PS(cur, 1)}, v{PS(cur, 2)}",
                               [f"v{PS(cur, 0)}", f"v{PS(cur, 1)}", f"v{PS(cur, 2)}"], [f"v{CHK}"])
                    if g == 15 and chk and "--nochkv" not in sys.argv:
                        a.valu(f"v_max_f32 v{CHK}, v{CHK}, v{PS(cur, 3)}", [f"v{CHK}", f"v{PS(cur, 3)}"], [f"v{CHK}"])
                elif m == 2:
                    if qvalid:
                        self.sm_cvt(qb_, qi)
                    did = self.sm_add_a(pb, pi) if pvalid else False
                    if not did:
                        if g == 15:
                            if chk and "--nochkv" not in sys.argv:
                                a.valu(f"v_cmp_lt_f32 vcc, s18, v{CHK}", ["s18", f"v{CHK}"], ["vcc"])
                        elif lacc_q:
                            q = lacc_q.pop(0)
                            self.add(L(q), L(q), PS(nxt, q))
                else:
                    Fw = F + 1
                    if Fw in self.reads and self.frag_needed(Fw):
                        self.wait_frag(Fw)
                    if g == 15 and chk and "--nochkb" not in sys.argv:
                        k = self.nslow
                        self.nslow += 1
                        a.other(f"s_cbranch_vccnz L_tramp_{k}", ["vcc"])
                        a.label(f"L_back_{k}")
                        self.tramps.append((k, cur))
                    if pvalid:
                        self.sm_exp(pb, pi, 1)
        assert not lacc_q

    def frag_needed(self, F):
        if F >= 32 * 32:
            return False
        if F // 32 == 31 and ((F % 32) >> 3) in (1, 3):
            return False
        return True

    def dma_piece(self, so, k):
        self.a.add(Inst(f"buffer_load_dwordx4 v1, s[8:11], {so} offen offset:{1024 * (k & 3)} sc1 lds", "vmem",
                        ["v1", "s[8:11]", so, "m0"], []))

    def dma_addr(self):
        a = self.a
        a.salu("s_add_u32 s19, s23, s22", ["s23", "s22"], ["s19", "scc"])
        a.salu("s_add_u32 s21, s19, 4096", ["s19"], ["s21", "scc"])
        a.salu("s_add_u32 s22, s22, 16384", ["s22"], ["s22", "scc"])
        a.salu("s_and_b32 s22, s22, 0x7ffff", ["s22"], ["s22", "scc"])

    def flag_wait(self):
        a = self.a
        a.salu("s_cmp_lg_u32 s16, 0", ["s16"], ["scc"])
        a.other("s_cbranch_scc1 L_nopoll")
        a.salu("s_mov_b64 s[78:79], exec", [], ["s78", "s79"])
        a.salu("s_mov_b64 exec, 1", [], ["exec"])
        a.salu("s_mov_b32 s77, 0", [], ["s77"])
        a.label("L_poll")
        a.add(Inst("buffer_load_dword v13, v12, s[68:71], 0 offen sc1", "vmem", ["v12", "s[68:71]"], ["v13"]))
        a.other("s_waitcnt vmcnt(0)")
        a.valu("v_readfirstlane_b32 s75, v13", ["v13"], ["s75"])
        a.nop(2)
        a.salu("s_cmp_eq_u32 s75, -1", ["s75"], ["scc"])
        a.other("s_cbranch_scc1 L_polled")
        a.other(f"s_sleep {SLEEP}")
        a.salu("s_add_u32 s77, s77, 1", ["s77"], ["s77"])
        a.salu(f"s_cmp_lt_u32 s77, {POLL_LIMIT}", ["s77"], ["scc"])
        a.other("s_cbranch_scc1 L_poll")
        a.label("L_polled")
        a.add(Inst("ds_write_b32 v14, v13", "ds", ["v14", "v13"], []))
        a.salu("s_mov_b64 exec, s[78:79]", ["s78", "s79"], ["exec"])
        a.other("s_waitcnt lgkmcnt(0)")
        a.label("L_nopoll")
        a.other("s_barrier")
        a.add(Inst("ds_read_b32 v13, v14", "ds", ["v14"], ["v13"]))
        a.other("s_waitcnt lgkmcnt(0)")
        a.valu("v_readfirstlane_b32 s17, v13", ["v13"], ["s17"])
        a.nop(2)
        a.salu("s_cmp_lg_u32 s17, -1", ["s17"], ["scc"])
        a.other("s_cbranch_scc1 L_fb")
        a.label("L_ready")

    def iteration(self, i, dma=True, vm=8, barrier=True, first=False):
        a = self.a
        ex0 = {}
        ex1 = {}
        if "--nodma" in sys.argv and not first:
            dma = False
            vm = 0
        if "--nobar" in sys.argv and not first:
            barrier = False
        if barrier:
            def bar():
                a.other(f"s_waitcnt vmcnt({vm})")
                a.other("s_barrier")
            ex1[(4, 2)] = [bar]
        if dma:
            slots = [2, 3] if first else [(i + 3) % 4]
            sites = [(g, m) for g in range(5, 13) for m in ((1, 3) if first else (1,))]
            n = 0
            for dslot in slots:
                for k in range(8):
                    g, m = sites[n]
                    n += 1
                    fns = []
                    if k == 0:
                        fns.append(self.dma_addr)
                        fns.append(lambda dslot=dslot: a.salu(f"s_add_u32 m0, s20, {dslot * 32768}", ["s20"], ["m0", "scc"]))
                    if k == 4:
                        fns.append(lambda dslot=dslot: a.salu(f"s_add_u32 m0, s20, {dslot * 32768 + 4096}", ["s20"], ["m0", "scc"]))
                    ex1.setdefault((g, m - 1), []).extend(fns)
                    so = "s19" if k < 4 else "s21"
                    ex1.setdefault((g, m), []).append(lambda so=so, k=k: self.dma_piece(so, k))
        u0 = 2 * i
        last = i == 31
        self.cycle(u0, 32 * i, has_qk=not last, has_sm=True, has_next=not last, extra=ex0)
        self.cycle(u0 + 1, 32 * i + 16, has_qk=not last, has_sm=not last, has_next=not last, extra=ex1)

    def rowmax(self, buf, qb, dst, t):
        a = self.a
        s0, s1 = S(buf, 0, qb), S(buf, 1, qb)
        a.valu(f"v_max3_f32 v{dst}, v{s0}, v{s0 + 1}, v{s0 + 2}", [f"v{s0}", f"v{s0 + 1}", f"v{s0 + 2}"], [f"v{dst}"])
        a.valu(f"v_max3_f32 v{dst}, v{dst}, v{s0 + 3}, v{s1}", [f"v{dst}", f"v{s0 + 3}", f"v{s1}"], [f"v{dst}"])
        a.valu(f"v_max3_f32 v{dst}, v{dst}, v{s1 + 1}, v{s1 + 2}", [f"v{dst}", f"v{s1 + 1}", f"v{s1 + 2}"], [f"v{dst}"])
        a.valu(f"v_max_f32 v{dst}, v{dst}, v{s1 + 3}", [f"v{dst}", f"v{s1 + 3}"], [f"v{dst}"])
        self.xlane(dst, t, "v_max_f32")

    def xlane(self, dst, t, op):
        a = self.a
        for sw in ("v_permlane16_swap_b32", "v_permlane32_swap_b32"):
            a.valu(f"v_mov_b32 v{t}, v{dst}", [f"v{dst}"], [f"v{t}"])
            a.add(Inst(f"{sw} v{dst}, v{t}", "perm", [f"v{dst}", f"v{t}"], [f"v{dst}", f"v{t}"]))
            a.valu(f"{op} v{dst}, v{dst}, v{t}", [f"v{dst}", f"v{t}"], [f"v{dst}"])

    def slow(self, cur):
        a = self.a
        nxt = 1 - cur
        a.label(f"L_slow_{cur}")
        a.nop(16)
        DL, FF, T0 = 150, 154, 158
        for qb in range(4):
            self.rowmax(cur, qb, DL + qb, T0)
            a.valu(f"v_ceil_f32 v{DL + qb}, v{DL + qb}", [f"v{DL + qb}"], [f"v{DL + qb}"])
            a.valu(f"v_max_f32 v{DL + qb}, 0, v{DL + qb}", [f"v{DL + qb}"], [f"v{DL + qb}"])
            a.trans(f"v_exp_f32 v{FF + qb}, -v{DL + qb}", [f"v{DL + qb}"], [f"v{FF + qb}"])
        for qb in range(4):
            d, f = DL + qb, FF + qb
            for r in range(4):
                x = NEGM(qb) + r
                a.valu(f"v_sub_f32 v{x}, v{x}, v{d}", [f"v{x}", f"v{d}"], [f"v{x}"])
            for b in (cur, nxt):
                for tb in range(2):
                    for r in range(4):
                        x = S(b, tb, qb) + r
                        a.valu(f"v_sub_f32 v{x}, v{x}, v{d}", [f"v{x}", f"v{d}"], [f"v{x}"])
            a.valu(f"v_mul_f32 v{L(qb)}, v{L(qb)}, v{f}", [f"v{L(qb)}", f"v{f}"], [f"v{L(qb)}"])
            for db in range(8):
                for r in range(4):
                    x = O(db, qb) + r
                    t = 160 + ((db * 4 + r) % 8)
                    a.valu(f"v_accvgpr_read_b32 v{t}, a{x}", [f"a{x}"], [f"v{t}"])
                    a.valu(f"v_mul_f32 v{t}, v{t}, v{f}", [f"v{t}", f"v{f}"], [f"v{t}"])
                    a.valu(f"v_accvgpr_write_b32 a{x}, v{t}", [f"v{t}"], [f"a{x}"])
        for pi in range(16):
            self.sm_exp(cur, pi, 0)
            self.sm_exp(cur, pi, 1)
            self.sm_add_a(cur, pi)
            self.sm_add_b(cur, pi)
            self.sm_cvt(cur, pi)
        self.sm_exp(nxt, 0, 0)
        a.nop(4)
        a.other("s_setpc_b64 s[86:87]", ["s86", "s87"])

    def unpack(self, src, dst):
        a = self.a
        for k in range(4):
            a.valu(f"v_lshlrev_b32 v{dst + 2 * k}, 16, v{src + k}", [f"v{src + k}"], [f"v{dst + 2 * k}"])
            a.valu(f"v_and_b32 v{dst + 2 * k + 1}, 0xffff0000, v{src + k}", [f"v{src + k}"], [f"v{dst + 2 * k + 1}"])

    def rnd(self, x0, T):
        a = self.a
        for k in range(4):
            self.cvt(T + k, x0 + 2 * k, x0 + 2 * k + 1)
        for k in range(4):
            a.valu(f"v_lshlrev_b32 v{x0 + 2 * k}, 16, v{T + k}", [f"v{T + k}"], [f"v{x0 + 2 * k}"])
            a.valu(f"v_and_b32 v{x0 + 2 * k + 1}, 0xffff0000, v{T + k}", [f"v{T + k}"], [f"v{x0 + 2 * k + 1}"])

    def pk(self, op, x, y, bcast, neg=False):
        mods = ""
        if bcast:
            ye = y & ~1
            sel = y & 1
            mods += f" op_sel:[0,{sel}] op_sel_hi:[1,{sel}]"
            ys = f"v[{ye}:{ye + 1}]"
        else:
            ys = f"v[{y}:{y + 1}]"
        if neg:
            mods += " neg_lo:[0,1] neg_hi:[0,1]"
        self.a.valu(f"{op} v[{x}:{x + 1}], v[{x}:{x + 1}], {ys}{mods}", [f"v[{x}:{x + 1}]", ys], [f"v[{x}:{x + 1}]"])

    def tile_sregs(self, tile_s):
        a = self.a
        a.salu("s_lshl_b32 s75, s72, 11", ["s72"], ["s75"])
        a.salu(f"s_lshl_b32 s76, {tile_s}, 6", [tile_s], ["s76"])
        a.salu("s_add_u32 s75, s75, s76", ["s75", "s76"], ["s75"])
        a.salu("s_lshl_b32 s76, s72, 5", ["s72"], ["s76"])
        a.salu(f"s_add_u32 s76, s76, {tile_s}", ["s76", tile_s], ["s76"])
        a.salu("s_lshl_b32 s76, s76, 8", ["s76"], ["s76"])
        a.salu("s_lshl_b32 s77, s16, 6", ["s16"], ["s77"])
        a.salu("s_add_u32 s76, s76, s77", ["s76", "s77"], ["s76"])
        a.salu("s_lshr_b32 s77, s16, 1", ["s16"], ["s77"])
        a.salu("s_lshl_b32 s77, s77, 5", ["s77"], ["s77"])
        a.salu("s_add_u32 s77, s77, s75", ["s77", "s75"], ["s77"])
        a.salu("s_lshl_b32 s79, s77, 9", ["s77"], ["s79"])
        a.salu("s_lshl_b32 s77, s77, 1", ["s77"], ["s77"])
        a.salu("s_and_b32 s78, s16, 1", ["s16"], ["s78"])
        a.salu("s_lshl_b32 s78, s78, 8", ["s78"], ["s78"])
        a.salu("s_add_u32 s79, s79, s78", ["s79", "s78"], ["s79"])
        a.salu("s_lshl_b32 s78, s75, 9", ["s75"], ["s78"])
        a.salu("s_lshl_b32 s80, s16, 7", ["s16"], ["s80"])
        a.salu("s_add_u32 s78, s78, s80", ["s78", "s80"], ["s78"])

    def load_k(self, KX, KP, tag, pol=" nt"):
        a = self.a
        self.vmem(f"buffer_load_dwordx4 v[{KP}:{KP + 3}], v8, s[52:55], s76 offen", ["v8", "s[52:55]", "s76"], [f"v[{KP}:{KP + 3}]"], tag + "s")
        self.vmem(f"buffer_load_dwordx4 v[{KP + 4}:{KP + 7}], v8, s[56:59], s76 offen", ["v8", "s[56:59]", "s76"], [f"v[{KP + 4}:{KP + 7}]"], tag + "s")
        for e in range(4):
            for hh in range(2):
                d = f"v[{KX + 8 * e + 4 * hh}:{KX + 8 * e + 4 * hh + 3}]"
                self.vmem(f"buffer_load_dwordx4 {d}, v6, s[44:47], s78 offen offset:{16 * hh}{pol}", ["v6", "s[44:47]", "s78"], [d], f"{tag}{e}")
            if e < 3:
                a.salu("s_add_u32 s78, s78, 8192", ["s78"], ["s78"])

    def load_v(self, VX, VP, tag, pol=" nt"):
        a = self.a
        for (p, srd) in ((VP, "s[60:63]"), (VP + 4, "s[64:67]")):
            for hh in range(2):
                self.vmem(f"buffer_load_dwordx2 v[{p + 2 * hh}:{p + 2 * hh + 1}], v9, {srd}, s77 offen offset:{32 * hh}",
                          ["v9", srd, "s77"], [f"v[{p + 2 * hh}:{p + 2 * hh + 1}]"], tag + "s")
        for j in range(8):
            if j == 4:
                a.salu("s_add_u32 s79, s79, 8192", ["s79"], ["s79"])
            d = f"v[{VX + 4 * j}:{VX + 4 * j + 3}]"
            self.vmem(f"buffer_load_dwordx4 {d}, v7, s[48:51], s79 offen offset:{512 * (j & 3)}{pol}", ["v7", "s[48:51]", "s79"], [d], tag)

    def proc_k(self, KX, KP, tag, SC, T, CS, outs, sink):
        a = self.a
        self.wait_vm(tag + "s")
        self.unpack(KP, SC)
        self.unpack(KP + 4, SC + 8)
        for e in range(4):
            x0 = KX + 8 * e
            self.wait_vm(f"{tag}{e}")
            for k in range(8):
                a.valu(f"v_cvt_f32_i32 v{x0 + k}, v{x0 + k}", [f"v{x0 + k}"], [f"v{x0 + k}"])
            self.rnd(x0, T)
            for k in range(4):
                self.pk("v_pk_add_f32", x0 + 2 * k, SC + 8 + 2 * k, False, neg=True)
            self.rnd(x0, T)
            for k in range(4):
                self.pk("v_pk_mul_f32", x0 + 2 * k, SC + 2 * k, False)
            self.rnd(x0, T)
            for k in range(4):
                self.pk("v_pk_mul_f32", x0 + 2 * k, CS, False)
            o = outs[self.outi % len(outs)]
            self.outi += 1
            for k in range(4):
                self.cvt(o + k, x0 + 2 * k, x0 + 2 * k + 1)
            sink(e, o)

    def proc_v(self, VX, VP, tag, SC, T, outs, sink):
        a = self.a
        self.wait_vm(tag + "s")
        self.unpack(VP, SC)
        self.unpack(VP + 4, SC + 8)
        self.wait_vm(tag)
        for j2 in range(4):
            x0 = VX + 8 * j2
            for k in range(8):
                a.valu(f"v_cvt_f32_i32 v{x0 + k}, v{x0 + k}", [f"v{x0 + k}"], [f"v{x0 + k}"])
            self.rnd(x0, T)
            for k in range(4):
                self.pk("v_pk_add_f32", x0 + 2 * k, SC + 8 + 2 * j2 + (k >> 1), True, neg=True)
            self.rnd(x0, T)
            for k in range(4):
                self.pk("v_pk_mul_f32", x0 + 2 * k, SC + 2 * j2 + (k >> 1), True)
        for c in range(4):
            o = outs[self.outi % len(outs)]
            self.outi += 1
            for k in range(4):
                self.cvt(o + k, VX + 4 * (2 * k) + c, VX + 4 * (2 * k + 1) + c)
            sink(c, o)

    def gdest(self, tile_s):
        a = self.a
        a.salu("s_lshl_b32 s81, s72, 19", ["s72"], ["s81"])
        a.salu(f"s_lshl_b32 s80, {tile_s}, 14", [tile_s], ["s80"])
        a.salu("s_add_u32 s81, s81, s80", ["s81", "s80"], ["s81"])
        a.salu("s_lshl_b32 s80, s16, 12", ["s16"], ["s80"])
        a.salu("s_add_u32 s82, s81, s80", ["s81", "s80"], ["s82"])
        a.salu(f"s_add_u32 s82, s82, {VWS}", ["s82"], ["s82"])
        a.salu("s_lshl_b32 s80, s16, 10", ["s16"], ["s80"])
        a.salu("s_add_u32 s81, s81, s80", ["s81", "s80"], ["s81"])

    def gstore_k(self, e, o):
        self.vmem(f"buffer_store_dwordx4 v[{o}:{o + 3}], v1, s[8:11], s81 offen{WSTORE}", [f"v[{o}:{o + 3}]", "v1", "s[8:11]", "s81"], [], "st", store=True)
        if e < 3:
            self.a.salu("s_add_u32 s81, s81, 4096", ["s81"], ["s81"])

    def gstore_v(self, c, o):
        self.vmem(f"buffer_store_dwordx4 v[{o}:{o + 3}], v1, s[8:11], s82 offen offset:{1024 * c}{WSTORE}",
                  [f"v[{o}:{o + 3}]", "v1", "s[8:11]", "s82"], [], "st", store=True)

    def lds_write(self, addr, off, o):
        self.a.add(Inst(f"ds_write_b128 {addr}, v[{o}:{o + 3}] offset:{off}", "store", [addr, f"v[{o}:{o + 3}]"], []))

    def fallback_deq(self):
        a = self.a
        a.label("L_deq")
        self.vm = []
        self.outi = 0
        X, PK_, SC, T, CS, OUTS = 168, 200, 208, 224, 228, [232, 236, 240, 244]
        a.valu(f"v_mov_b32 v{CS}, 0x{f32bits(CSCALE):08x}", [], [f"v{CS}"])
        a.valu(f"v_mov_b32 v{CS + 1}, 0x{f32bits(CSCALE):08x}", [], [f"v{CS + 1}"])
        self.tile_sregs("s74")
        self.gdest("s74")
        self.load_k(X, PK_, "k")
        self.proc_k(X, PK_, "k", SC, T, CS, OUTS, self.gstore_k)
        a.other("s_waitcnt vmcnt(0)")
        self.load_v(X, PK_, "v")
        self.proc_v(X, PK_, "v", SC, T, OUTS, self.gstore_v)
        a.other("s_waitcnt vmcnt(0)")
        a.other("s_setpc_b64 s[84:85]", ["s84", "s85"])

    def gen(self):
        a = self.a
        a.label(MAIN)
        a.salu("s_cmp_ge_u32 s2, 256", ["s2"], ["scc"])
        a.other("s_cbranch_scc1 L_done")
        self.stamp(0, True)
        a.salu("s_load_dwordx16 s[24:39], s[0:1], 0", [], ["s[24:39]"])
        a.salu("s_load_dwordx4 s[40:43], s[0:1], 64", [], ["s[40:43]"])
        a.valu("v_lshrrev_b32 v3, 6, v0", ["v0"], ["v3"])
        a.valu("v_and_b32 v0, 63, v0", ["v0"], ["v0"])
        a.valu("v_readfirstlane_b32 s16, v3", ["v3"], ["s16"])
        a.valu("v_lshlrev_b32 v1, 4, v0", ["v0"], ["v1"])
        a.valu("v_add_u32 v2, 0x10000, v1", ["v1"], ["v2"])
        a.valu(f"v_add_u32 v3, {LDS_K01}, v1", ["v1"], ["v3"])
        a.valu("v_and_b32 v4, 15, v0", ["v0"], ["v4"])
        a.valu("v_lshrrev_b32 v5, 4, v0", ["v0"], ["v5"])
        a.valu("v_lshlrev_b32 v6, 9, v4", ["v4"], ["v6"])
        a.valu("v_lshl_add_u32 v6, v5, 5, v6", ["v5", "v6"], ["v6"])
        a.valu("v_and_b32 v7, 2, v4", ["v4"], ["v7"])
        a.valu("v_lshlrev_b32 v7, 2, v7", ["v7"], ["v7"])
        a.valu("v_lshrrev_b32 v8, 2, v4", ["v4"], ["v8"])
        a.valu("v_lshl_add_u32 v7, v8, 1, v7", ["v8", "v7"], ["v7"])
        a.valu("v_and_b32 v8, 1, v4", ["v4"], ["v8"])
        a.valu("v_add_u32 v7, v7, v8", ["v7", "v8"], ["v7"])
        a.valu("v_lshlrev_b32 v7, 4, v7", ["v7"], ["v7"])
        a.valu("v_lshl_add_u32 v7, v5, 11, v7", ["v5", "v7"], ["v7"])
        a.valu("v_lshlrev_b32 v8, 4, v5", ["v5"], ["v8"])
        a.valu("v_lshlrev_b32 v9, 3, v5", ["v5"], ["v9"])
        a.valu("v_lshlrev_b32 v10, 8, v4", ["v4"], ["v10"])
        a.valu("v_lshl_add_u32 v10, v5, 4, v10", ["v5", "v10"], ["v10"])
        a.valu(f"v_mov_b32 v14, {LDS_MSG}", [], ["v14"])
        a.salu("s_and_b32 s72, s2, 7", ["s2"], ["s72"])
        a.salu("s_lshr_b32 s73, s2, 3", ["s2"], ["s73"])
        a.salu("s_and_b32 s75, s73, 3", ["s73"], ["s75"])
        a.salu("s_lshl_b32 s88, s72, 2", ["s72"], ["s88"])
        a.salu("s_add_u32 s88, s88, s75", ["s88", "s75"], ["s88"])
        a.salu("s_lshr_b32 s75, s73, 2", ["s73"], ["s75"])
        a.salu("s_lshl_b32 s88, s88, 19", ["s88"], ["s88"])
        a.salu("s_lshl_b32 s75, s75, 16", ["s75"], ["s75"])
        a.salu("s_add_u32 s88, s88, s75", ["s88", "s75"], ["s88"])
        a.salu("s_lshl_b32 s75, s16, 14", ["s16"], ["s75"])
        a.salu("s_add_u32 s88, s88, s75", ["s88", "s75"], ["s88"])
        a.salu("s_add_u32 s89, s88, 4096", ["s88"], ["s89"])
        a.salu("s_add_u32 s90, s88, 8192", ["s88"], ["s90"])
        a.salu("s_add_u32 s91, s88, 12288", ["s88"], ["s91"])
        a.salu(f"s_mov_b32 s18, 0x{f32bits(THR):08x}", [], ["s18"])
        a.salu("s_lshl_b32 s20, s16, 13", ["s16"], ["s20"])
        a.salu("s_lshl_b32 s23, s72, 19", ["s72"], ["s23"])
        a.salu("s_and_b32 s75, s16, 1", ["s16"], ["s75"])
        a.salu("s_lshr_b32 s76, s16, 1", ["s16"], ["s76"])
        a.salu("s_lshl_b32 s77, s75, 1", ["s75"], ["s77"])
        a.salu("s_add_u32 s76, s76, s77", ["s76", "s77"], ["s76"])
        a.salu("s_lshl_b32 s77, s73, 1", ["s73"], ["s77"])
        a.salu("s_add_u32 s76, s76, s77", ["s76", "s77"], ["s76"])
        a.salu("s_lshl_b32 s22, s76, 13", ["s76"], ["s22"])
        a.salu("s_and_b32 s22, s22, 0x7ffff", ["s22"], ["s22"])
        a.salu("s_cmp_eq_u32 s75, 1", ["s75"], ["scc"])
        a.salu(f"s_cselect_b32 s76, 0, {VWS}", ["scc"], ["s76"])
        a.salu("s_add_u32 s23, s23, s76", ["s23", "s76"], ["s23"])
        a.salu("s_add_u32 s74, s73, 1", ["s73"], ["s74"])
        a.salu("s_and_b32 s74, s74, 31", ["s74"], ["s74"])
        a.salu("s_add_u32 s83, s73, 2", ["s73"], ["s83"])
        a.salu("s_and_b32 s83, s83, 31", ["s83"], ["s83"])
        a.salu("s_lshl_b32 s75, s16, 10", ["s16"], ["s75"])
        a.valu("v_add_u32 v11, s75, v1", ["s75", "v1"], ["v11"])
        a.valu("v_add_u32 v13, s75, v3", ["s75", "v3"], ["v13"])
        a.salu("s_lshr_b32 s75, s16, 1", ["s16"], ["s75"])
        a.salu("s_lshl_b32 s75, s75, 14", ["s75"], ["s75"])
        a.salu("s_and_b32 s76, s16, 1", ["s16"], ["s76"])
        a.salu("s_lshl_b32 s76, s76, 12", ["s76"], ["s76"])
        a.salu("s_add_u32 s75, s75, s76", ["s75", "s76"], ["s75"])
        a.valu("v_add_u32 v15, s75, v1", ["s75", "v1"], ["v15"])
        a.salu("s_lshl_b32 s76, s72, 5", ["s72"], ["s76"])
        a.valu("v_mov_b32 v12, s76", ["s76"], ["v12"])
        a.other("s_waitcnt lgkmcnt(0)")
        for base, lo, nb in ((4, 24, 16777216), (8, 42, WS_BYTES), (12, 38, 16777216), (44, 26, 8388608), (48, 28, 8388608),
                             (52, 30, 65536), (56, 32, 65536), (60, 34, 32768), (64, 36, 32768), (68, 40, 256)):
            a.salu(f"s_mov_b32 s{base}, s{lo}", [], [f"s{base}"])
            a.salu(f"s_mov_b32 s{base + 1}, s{lo + 1}", [], [f"s{base + 1}"])
            a.salu(f"s_mov_b32 s{base + 2}, {nb}", [], [f"s{base + 2}"])
            a.salu(f"s_mov_b32 s{base + 3}, 0x00020000", [], [f"s{base + 3}"])
        K0, V0 = 16, 48
        KP0, VP0 = 176, 184
        SC, T, CS, OUTS = 216, 232, 240, [244, 248, 252]
        self.vm = []
        self.outi = 0
        self.tile_sregs("s73")
        self.load_k(K0, KP0, "k0")
        self.load_v(V0, VP0, "v0")
        if QEARLY:
            for qb in range(4):
                for ks in range(4):
                    d = rr("a", Q(qb, ks), 4)
                    so = ["s88", "s89", "s90", "s91"][qb]
                    self.vmem(f"buffer_load_dwordx4 {d}, v10, s[4:7], {so} offen offset:{64 * ks} nt", ["v10", "s[4:7]", so], [d], "q")
        self.gdest("s73")
        a.valu(f"v_mov_b32 v{CS}, 0x{f32bits(CSCALE):08x}", [], [f"v{CS}"])
        a.valu(f"v_mov_b32 v{CS + 1}, 0x{f32bits(CSCALE):08x}", [], [f"v{CS + 1}"])
        for r in range(128):
            a.valu(f"v_accvgpr_write_b32 a{r}, 0", [], [f"a{r}"])

        def sink_k0(e, o):
            self.gstore_k(e, o)
            self.lds_write("v13", 4096 * e, o)

        self.proc_k(K0, KP0, "k0", SC, T, CS, OUTS, sink_k0)
        self.proc_v(V0, VP0, "v0", SC, T, OUTS, self.gstore_v)
        self.stamp(1, True)
        if not QEARLY:
            for qb in range(4):
                for ks in range(4):
                    d = rr("a", Q(qb, ks), 4)
                    so = ["s88", "s89", "s90", "s91"][qb]
                    self.vmem(f"buffer_load_dwordx4 {d}, v10, s[4:7], {so} offen offset:{64 * ks} nt", ["v10", "s[4:7]", so], [d], "q")
        for qb in range(4):
            a.valu(f"v_mov_b32 v{L(qb)}, 0", [], [f"v{L(qb)}"])
        a.other("s_waitcnt vmcnt(0) lgkmcnt(0)" if QEARLY else "s_waitcnt vmcnt(16) lgkmcnt(0)")
        self.stamp(4, True)
        a.other("s_barrier")
        self.stamp(2, True)
        a.salu("s_cmp_lg_u32 s16, 0", ["s16"], ["scc"])
        a.other("s_cbranch_scc1 L_noflag")
        a.salu("s_lshl_b32 s75, 1, s73", ["s73"], ["s75"])
        a.valu("v_mov_b32 v13, s75", ["s75"], ["v13"])
        a.salu("s_mov_b64 s[78:79], exec", [], ["s78", "s79"])
        a.salu("s_mov_b64 exec, 1", [], ["exec"])
        a.add(Inst("buffer_atomic_or v13, v12, s[68:71], 0 offen sc1", "store", ["v13", "v12", "s[68:71]"], []))
        a.salu("s_mov_b64 exec, s[78:79]", ["s78", "s79"], ["exec"])
        a.label("L_noflag")
        for f in range(16):
            d = rr("a", 192 + 4 * f, 4)
            a.add(Inst(f"ds_read_b128 {d}, v3 offset:{1024 * f}", "ds", ["v3"], [d]))
        a.other("s_waitcnt vmcnt(0) lgkmcnt(8)")
        self.stamp(3, True)
        for f in range(8):
            tb, ks = f >> 2, f & 3
            for qb in range(4):
                d = rr("v", S(0, tb, qb), 4)
                self.mfma(d, rr("a", 192 + 4 * f, 4), rr("a", Q(qb, ks), 4), "0" if ks == 0 else d)
        a.nop(8)
        for qb in range(4):
            self.rowmax(0, qb, 150 + qb, 158)
        for qb in range(4):
            for r in range(4):
                a.valu(f"v_sub_f32 v{NEGM(qb) + r}, 0, v{150 + qb}", [f"v{150 + qb}"], [f"v{NEGM(qb) + r}"])
            for tb in range(2):
                for r in range(4):
                    x = S(0, tb, qb) + r
                    a.valu(f"v_sub_f32 v{x}, v{x}, v{150 + qb}", [f"v{x}", f"v{150 + qb}"], [f"v{x}"])
        a.other("s_waitcnt lgkmcnt(0)")
        pi = 0
        for f in range(8):
            tb, ks = f >> 2, f & 3
            for qb in range(4):
                d = rr("v", S(1, tb, qb), 4)
                self.mfma(d, rr("a", 192 + 4 * (8 + f), 4), rr("a", Q(qb, ks), 4),
                          rr("v", NEGM(qb), 4) if ks == 0 else d)
                if qb % 2 == 0:
                    self.sm_exp(0, pi, 0)
                    self.sm_exp(0, pi, 1)
                else:
                    self.sm_add_a(0, pi)
                    self.sm_add_b(0, pi)
                    self.sm_cvt(0, pi)
                    pi += 1
        assert pi == 16
        self.sm_exp(1, 0, 0)
        self.sm_exp(1, 0, 1)
        self.stamp(12, True)
        self.flag_wait()
        self.stamp(13, True)
        for sl in range(2):
            self.dma_addr()
            for hf in range(2):
                a.salu(f"s_add_u32 m0, s20, {sl * 32768 + hf * 4096}", ["s20"], ["m0", "scc"])
                a.nop(1)
                for k in range(4):
                    self.dma_piece("s19" if hf == 0 else "s21", k)
        a.other("s_waitcnt vmcnt(8)")
        a.other("s_barrier")
        for F in range(R - 1):
            self.ds_read_frag(F)
        self.wait_frag(0)
        self.stamp(5, True)
        self.stamp(6)
        if STAMPS:
            a.other("s_waitcnt lgkmcnt(0)")
        self.iteration(0, first=True, vm=0)
        a.salu("s_mov_b32 s17, 0", [], ["s17"])
        a.raw(".p2align 6")
        a.label("L_loop")
        for i in range(1, 5):
            self.iteration(i)
        a.salu("s_add_u32 s17, s17, 1", ["s17"], ["s17", "scc"])
        a.salu("s_cmp_lt_u32 s17, 7", ["s17"], ["scc"])
        a.other("s_cbranch_scc1 L_loop")
        self.reads = [F + 24 * 32 for F in self.reads]
        self.iteration(29, dma=False, vm=8)
        self.iteration(30, dma=False, vm=0)
        self.iteration(31, dma=False, barrier=False)
        self.stamp(7, True)
        self.stamp(8)
        for qb in range(4):
            self.xlane(L(qb), 158, "v_add_f32")
        for qb in range(4):
            a.trans(f"v_rcp_f32 v{150 + 2 * qb}, v{L(qb)}", [f"v{L(qb)}"], [f"v{150 + 2 * qb}"])
        a.nop(4)
        k = 0
        for half in range(2):
            for qb in range(4):
                so = ["s88", "s89", "s90", "s91"][qb]
                tb_ = 176 + (k % 3) * 24
                k += 1
                pkb = tb_ + 16
                for r in range(4):
                    for c in range(4):
                        t = tb_ + 4 * r + c
                        x = O(4 * half + c, qb) + r
                        a.valu(f"v_accvgpr_read_b32 v{t}, a{x}", [f"a{x}"], [f"v{t}"])
                il = 150 + 2 * qb
                for j in range(8):
                    t = tb_ + 2 * j
                    a.valu(f"v_pk_mul_f32 v[{t}:{t + 1}], v[{t}:{t + 1}], v[{il}:{il + 1}] op_sel:[0,0] op_sel_hi:[1,0]",
                           [f"v[{t}:{t + 1}]", f"v{il}"], [f"v[{t}:{t + 1}]"])
                for j in range(8):
                    self.cvt(pkb + j, tb_ + 2 * j, tb_ + 2 * j + 1)
                for hh in range(2):
                    d = rr("v", pkb + 4 * hh, 4)
                    a.add(Inst(f"buffer_store_dwordx4 {d}, v10, s[12:15], {so} offen offset:{128 * half + 64 * hh}{OSTORE}", "store",
                               [d, "v10", "s[12:15]", so], []))
        self.stamp(9, True)
        self.dump_stamps(14)
        a.label("L_done")
        a.other("s_endpgm")
        for k, cur in self.tramps:
            a.label(f"L_tramp_{k}")
            a.other(f"s_call_b64 s[86:87], L_slow_{cur}", [], ["s86", "s87"])
            a.other(f"s_branch L_back_{k}")
        self.slow(0)
        self.slow(1)
        a.label("L_fb")
        a.salu("s_not_b32 s75, s17", ["s17"], ["s75"])
        a.salu("s_ff1_i32_b32 s74, s75", ["s75"], ["s74"])
        a.salu("s_bitset1_b32 s17, s74", ["s17", "s74"], ["s17"])
        a.other("s_call_b64 s[84:85], L_deq", [], ["s84", "s85"])
        a.nop(4)
        a.salu("s_cmp_lg_u32 s17, -1", ["s17"], ["scc"])
        a.other("s_cbranch_scc1 L_fb")
        a.other("s_waitcnt vmcnt(0)")
        a.other("s_barrier")
        a.other("s_branch L_ready")
        self.fallback_deq()
        n = a.pad_hazards(verbose="-v" in sys.argv)
        print("main: hazard pads inserted:", n, file=sys.stderr)
        return a.text()


HEADER = f"""; Kernarg layout for this problem (80 bytes, ptrs only, base s[0:1]):
; @launch grid=(256,1,1) block=(256,1,1) lds={LDS_BYTES}
.amdgcn_target "amdgcn-amd-amdhsa--gfx950"
.text
"""


def kd(name, vgpr, sgpr, accum):
    return f""".amdhsa_kernel {name}
  .amdhsa_next_free_vgpr {vgpr}
  .amdhsa_next_free_sgpr {sgpr}
  .amdhsa_accum_offset {accum}
  .amdhsa_group_segment_fixed_size 0
  .amdhsa_kernarg_size 80
  .amdhsa_user_sgpr_count 2
  .amdhsa_user_sgpr_kernarg_segment_ptr 1
  .amdhsa_system_sgpr_workgroup_id_x 1
  .amdhsa_float_denorm_mode_32 3
  .amdhsa_float_denorm_mode_16_64 3
.end_amdhsa_kernel
"""


def main():
    out = HEADER
    out += f".globl {MAIN}\n.p2align 8\n.type {MAIN},@function\n"
    out += Main().gen()
    out += '.section .rodata,"a"\n.p2align 6\n'
    out += kd(MAIN, 512, 102, 256)
    path = sys.argv[1] if len(sys.argv) > 1 and not sys.argv[1].startswith("-") else f"cdna_kernels/{NAME}.s"
    open(path, "w").write(out)
    print("wrote", path, len(out), "bytes", file=sys.stderr)


if __name__ == "__main__":
    main()
```

```python
import math
import struct
import sys

from asmlib import Asm, Inst, rr

NAME = "standalone__kv_cache_quant_int4_int2_kv_with_per_channel_or_per_token_scales__prompt"
MAIN = NAME + "_kernel"


def f32bits(x):
    return struct.unpack("<I", struct.pack("<f", x))[0]


CSCALE = (128.0 ** -0.5) * math.log2(math.e)
THR = 65536.0

VWS = 4 << 20
WS_BYTES = 8 << 20
R = 8
LDS_K01 = 131072
LDS_MSG = 147456
LDS_BYTES = 147456 + 256
POLL_LIMIT = 1 if "--forcefb" in sys.argv else 20000

STAMPS = "--stamps" in sys.argv
QEARLY = "--qearly" in sys.argv
SLEEP = int(sys.argv[sys.argv.index("--sleep") + 1]) if "--sleep" in sys.argv else 12
WSTORE = " sc1 nt" if "--wnt" in sys.argv else (" sc0 sc1" if "--w01" in sys.argv else (" sc0 sc1 nt" if "--w01nt" in sys.argv else " sc1"))
OSTORE = " nt" if "--ont" in sys.argv else (" sc0 sc1" if "--osc01" in sys.argv else (" sc1 nt" if "--osc1nt" in sys.argv else ("" if "--oplain" in sys.argv else " sc1")))
STAMP_REGS = [92, 94, 96, 98, 100, 24, 26, 28, 30, 32, 34, 36, 38, 40]


def S(buf, tb, qb):
    return 16 + buf * 32 + tb * 16 + qb * 4


def P(buf, qb):
    return 80 + buf * 16 + qb * 4


def NEGM(qb):
    return 112 + qb * 4


def TMP(pair):
    return 128 + 2 * (pair % 4)


def PS(buf, qb):
    return 136 + buf * 4 + qb


def L(qb):
    return 144 + qb


CHK = 148


def O(db, qb):
    return (db * 4 + qb) * 4


def Q(qb, ks):
    return 128 + (qb * 4 + ks) * 4


def RING(F):
    return 192 + 4 * (F % R)


class Main:
    def __init__(self):
        self.a = Asm()
        self.reads = []
        self.nslow = 0
        self.tramps = []
        self.vm = []

    def stamp(self, k, real=False):
        if STAMPS:
            r = STAMP_REGS[k]
            op = "s_memrealtime" if real else "s_memtime"
            self.a.salu(f"{op} s[{r}:{r + 1}]", [], [f"s{r}", f"s{r + 1}"])

    def dump_stamps(self, n):
        if not STAMPS:
            return
        a = self.a
        a.other("s_waitcnt vmcnt(0) lgkmcnt(0)")
        self.stamp(10)
        self.stamp(11, True)
        a.other("s_waitcnt lgkmcnt(0)")
        if "--dbgdump" in sys.argv:
            a.salu("s_mov_b64 exec, 1", [], ["exec"])
            R_ = STAMP_REGS
            a.salu(f"s_sub_u32 s3, s{R_[8]}, s{R_[6]}", [], ["s3"])
            items = [(1, f"s{R_[0]}", True), (2, f"s{R_[5]}", False), (3, f"s{R_[5]}", True), (4, f"s{R_[11]}", False), (5, "s3", False),
                     (6, f"s{R_[13]}", False), (7, f"s{R_[1]}", False), (9, f"s{R_[7]}", False), (10, f"s{R_[7]}", True), (11, f"s{R_[3]}", False), (12, f"s{R_[2]}", False)]
            for dw, sr, inv in items:
                a.valu(f"v_mov_b32 v1, {4 * dw}", [], ["v1"])
                a.valu(f"v_mov_b32 v2, {sr}", [sr], ["v2"])
                if inv:
                    a.valu("v_not_b32 v2, v2", ["v2"], ["v2"])
                a.add(Inst("buffer_atomic_umax v2, v1, s[68:71], 0 offen sc1", "store", ["v2", "v1"], []))
                a.nop(2)
            return
        a.salu("s_mov_b32 s10, 0x10000000", [], ["s10"])
        a.salu("s_lshl_b32 s3, s2, 2", ["s2"], ["s3"])
        a.salu("s_add_u32 s3, s3, s16", ["s3", "s16"], ["s3"])
        a.salu("s_lshl_b32 s3, s3, 6", ["s3"], ["s3"])
        a.salu("s_add_u32 s3, s3, 0x1000000", ["s3"], ["s3"])
        a.valu("v_mov_b32 v1, s3", ["s3"], ["v1"])
        for k in range(n):
            a.valu(f"v_mov_b32 v2, s{STAMP_REGS[k]}", [f"s{STAMP_REGS[k]}"], ["v2"])
            a.add(Inst(f"buffer_store_dword v2, v1, s[8:11], 0 offen offset:{4 * k}", "store", ["v2", "v1"], []))
            a.nop(2)

    def mfma(self, D, A, B, C):
        srcc = [] if C == "0" else [C]
        self.a.add(Inst(f"v_mfma_f32_16x16x32_bf16 {D}, {A}, {B}, {C}", "mfma", [A, B], [D], srcc=srcc, passes=4))

    def vmem(self, text, rd, wr, tag=None, store=False):
        self.a.add(Inst(text, "store" if store else "vmem", rd, wr))
        self.vm.append(tag)

    def wait_vm(self, tag):
        idx = len(self.vm) - 1 - self.vm[::-1].index(tag)
        n = len(self.vm) - 1 - idx
        assert n <= 63
        self.a.other(f"s_waitcnt vmcnt({n})")

    def ds_read_frag(self, F):
        slot = (F // 32) % 4
        n = F % 32
        off = slot * 32768 + n * 1024
        base = "v1" if off < 65536 else "v2"
        off %= 65536
        d = rr("a", RING(F), 4)
        self.a.add(Inst(f"ds_read_b128 {d}, {base} offset:{off}", "ds", [base], [d]))
        self.reads.append(F)

    def wait_frag(self, F):
        idx = self.reads.index(F)
        n = len(self.reads) - 1 - idx
        self.a.other(f"s_waitcnt lgkmcnt({n})")

    def exp(self, dst, src):
        self.a.trans(f"v_exp_f32 v{dst}, v{src}", [f"v{src}"], [f"v{dst}"])

    def add(self, dst, x, y):
        self.a.valu(f"v_add_f32 v{dst}, v{x}, v{y}", [f"v{x}", f"v{y}"], [f"v{dst}"])

    def cvt(self, dst, x, y):
        self.a.valu(f"v_cvt_pk_bf16_f32 v{dst}, v{x}, v{y}", [f"v{x}", f"v{y}"], [f"v{dst}"])

    @staticmethod
    def pair_info(pi):
        return pi >> 3, (pi >> 1) & 3, pi & 1

    def sm_exp(self, buf, pi, which):
        tb, qb, hf = self.pair_info(pi)
        self.exp(TMP(pi) + which, S(buf, tb, qb) + 2 * hf + which)

    def sm_add_a(self, buf, pi):
        tb, qb, hf = self.pair_info(pi)
        if tb == 0 and hf == 0:
            return False
        self.add(PS(buf, qb), PS(buf, qb), TMP(pi))
        return True

    def sm_add_b(self, buf, pi):
        tb, qb, hf = self.pair_info(pi)
        if tb == 0 and hf == 0:
            self.add(PS(buf, qb), TMP(pi), TMP(pi) + 1)
        else:
            self.add(PS(buf, qb), PS(buf, qb), TMP(pi) + 1)

    def sm_cvt(self, buf, pi):
        tb, qb, hf = self.pair_info(pi)
        self.cvt(P(buf, qb) + 2 * tb + hf, TMP(pi), TMP(pi) + 1)

    def cycle(self, u, F0, has_qk=True, has_sm=True, has_next=True, extra=None):
        a = self.a
        cur = (u + 1) % 2
        nxt = u % 2
        extra = extra or {}
        lacc_q = [0, 1, 2, 3]
        chk = has_sm and "--nochk" not in sys.argv
        for g in range(16):
            F = F0 + g
            phaseA = g < 8
            do_mfma = phaseA or has_qk
            if g <= 14:
                pb, pi = cur, g + 1
                pvalid = has_sm
            else:
                pb, pi = nxt, 0
                pvalid = has_next
            qb_, qi = cur, g
            qvalid = has_sm
            for m in range(4):
                if do_mfma:
                    fr = rr("a", RING(F), 4)
                    if phaseA:
                        d = rr("a", O(g, m), 4)
                        self.mfma(d, fr, rr("v", P(nxt, m), 4), d)
                    else:
                        tb, ks = (g - 8) >> 2, (g - 8) & 3
                        d = rr("v", S(nxt, tb, m), 4)
                        c = rr("v", NEGM(m), 4) if ks == 0 else d
                        self.mfma(d, fr, rr("a", Q(m, ks), 4), c)
                for fn in extra.get((g, m), []):
                    fn()
                if m == 0:
                    Fn = F + R - 1
                    if self.frag_needed(Fn):
                        self.ds_read_frag(Fn)
                    if qvalid:
                        self.sm_add_b(qb_, qi)
                elif m == 1:
                    if pvalid:
                        self.sm_exp(pb, pi, 0)
                    if g == 0 and lacc_q:
                        q = lacc_q.pop(0)
                        self.add(L(q), L(q), PS(nxt, q))
                    if g == 14 and chk and "--nochkv" not in sys.argv:
                        a.valu(f"v_max3_f32 v{CHK}, v{PS(cur, 0)}, v{PS(cur, 1)}, v{PS(cur, 2)}",
                               [f"v{PS(cur, 0)}", f"v{PS(cur, 1)}", f"v{PS(cur, 2)}"], [f"v{CHK}"])
                    if g == 15 and chk and "--nochkv" not in sys.argv:
                        a.valu(f"v_max_f32 v{CHK}, v{CHK}, v{PS(cur, 3)}", [f"v{CHK}", f"v{PS(cur, 3)}"], [f"v{CHK}"])
                elif m == 2:
                    if qvalid:
                        self.sm_cvt(qb_, qi)
                    did = self.sm_add_a(pb, pi) if pvalid else False
                    if not did:
                        if g == 15:
                            if chk and "--nochkv" not in sys.argv:
                                a.valu(f"v_cmp_lt_f32 vcc, s18, v{CHK}", ["s18", f"v{CHK}"], ["vcc"])
                        elif lacc_q:
                            q = lacc_q.pop(0)
                            self.add(L(q), L(q), PS(nxt, q))
                else:
                    Fw = F + 1
                    if Fw in self.reads and self.frag_needed(Fw):
                        self.wait_frag(Fw)
                    if pvalid:
                        self.sm_exp(pb, pi, 1)
                    if g == 15 and chk and "--nochkb" not in sys.argv:
                        k = self.nslow
                        self.nslow += 1
                        a.other(f"s_cbranch_vccnz L_tramp_{k}", ["vcc"])
                        a.label(f"L_back_{k}")
                        self.tramps.append((k, cur))
        assert not lacc_q

    def frag_needed(self, F):
        if F >= 32 * 32:
            return False
        if F // 32 == 31 and ((F % 32) >> 3) in (1, 3):
            return False
        return True

    def dma_piece(self, so, k):
        self.a.add(Inst(f"buffer_load_dwordx4 v1, s[8:11], {so} offen offset:{1024 * (k & 3)} sc1 lds", "vmem",
                        ["v1", "s[8:11]", so, "m0"], []))

    def dma_addr(self):
        a = self.a
        a.salu("s_add_u32 s19, s23, s22", ["s23", "s22"], ["s19", "scc"])
        a.salu("s_add_u32 s21, s19, 4096", ["s19"], ["s21", "scc"])
        a.salu("s_add_u32 s22, s22, 16384", ["s22"], ["s22", "scc"])
        a.salu("s_and_b32 s22, s22, 0x7ffff", ["s22"], ["s22", "scc"])

    def flag_wait(self):
        a = self.a
        a.salu("s_cmp_lg_u32 s16, 0", ["s16"], ["scc"])
        a.other("s_cbranch_scc1 L_nopoll")
        a.salu("s_mov_b64 s[78:79], exec", [], ["s78", "s79"])
        a.salu("s_mov_b64 exec, 1", [], ["exec"])
        a.salu("s_mov_b32 s77, 0", [], ["s77"])
        a.label("L_poll")
        a.add(Inst("buffer_load_dword v13, v12, s[68:71], 0 offen sc1", "vmem", ["v12", "s[68:71]"], ["v13"]))
        a.other("s_waitcnt vmcnt(0)")
        a.valu("v_readfirstlane_b32 s75, v13", ["v13"], ["s75"])
        a.nop(2)
        a.salu("s_cmp_eq_u32 s75, -1", ["s75"], ["scc"])
        a.other("s_cbranch_scc1 L_polled")
        a.other(f"s_sleep {SLEEP}")
        a.salu("s_add_u32 s77, s77, 1", ["s77"], ["s77"])
        a.salu(f"s_cmp_lt_u32 s77, {POLL_LIMIT}", ["s77"], ["scc"])
        a.other("s_cbranch_scc1 L_poll")
        a.label("L_polled")
        a.add(Inst("ds_write_b32 v14, v13", "ds", ["v14", "v13"], []))
        a.salu("s_mov_b64 exec, s[78:79]", ["s78", "s79"], ["exec"])
        a.other("s_waitcnt lgkmcnt(0)")
        a.label("L_nopoll")
        a.other("s_barrier")
        a.add(Inst("ds_read_b32 v13, v14", "ds", ["v14"], ["v13"]))
        a.other("s_waitcnt lgkmcnt(0)")
        a.valu("v_readfirstlane_b32 s17, v13", ["v13"], ["s17"])
        a.nop(2)
        a.salu("s_cmp_lg_u32 s17, -1", ["s17"], ["scc"])
        a.other("s_cbranch_scc1 L_fb")
        a.label("L_ready")

    def iteration(self, i, dma=True, vm=8, barrier=True, first=False):
        a = self.a
        ex0 = {}
        ex1 = {}
        if "--nodma" in sys.argv and not first:
            dma = False
            vm = 0
        if "--nobar" in sys.argv and not first:
            barrier = False
        if first:
            ex1[(4, 2)] = [self.flag_wait]
        elif barrier:
            def bar():
                a.other(f"s_waitcnt vmcnt({vm})")
                a.other("s_barrier")
            ex1[(4, 2)] = [bar]
        if dma:
            slots = [2, 3] if first else [(i + 3) % 4]
            sites = [(g, m) for g in range(5, 13) for m in ((1, 3) if first else (1,))]
            n = 0
            for dslot in slots:
                for k in range(8):
                    g, m = sites[n]
                    n += 1
                    fns = []
                    if k == 0:
                        fns.append(self.dma_addr)
                        fns.append(lambda dslot=dslot: a.salu(f"s_add_u32 m0, s20, {dslot * 32768}", ["s20"], ["m0", "scc"]))
                    if k == 4:
                        fns.append(lambda dslot=dslot: a.salu(f"s_add_u32 m0, s20, {dslot * 32768 + 4096}", ["s20"], ["m0", "scc"]))
                    ex1.setdefault((g, m - 1), []).extend(fns)
                    so = "s19" if k < 4 else "s21"
                    ex1.setdefault((g, m), []).append(lambda so=so, k=k: self.dma_piece(so, k))
        u0 = 2 * i
        last = i == 31
        self.cycle(u0, 32 * i, has_qk=not last, has_sm=True, has_next=not last, extra=ex0)
        self.cycle(u0 + 1, 32 * i + 16, has_qk=not last, has_sm=not last, has_next=not last, extra=ex1)

    def rowmax(self, buf, qb, dst, t):
        a = self.a
        s0, s1 = S(buf, 0, qb), S(buf, 1, qb)
        a.valu(f"v_max3_f32 v{dst}, v{s0}, v{s0 + 1}, v{s0 + 2}", [f"v{s0}", f"v{s0 + 1}", f"v{s0 + 2}"], [f"v{dst}"])
        a.valu(f"v_max3_f32 v{dst}, v{dst}, v{s0 + 3}, v{s1}", [f"v{dst}", f"v{s0 + 3}", f"v{s1}"], [f"v{dst}"])
        a.valu(f"v_max3_f32 v{dst}, v{dst}, v{s1 + 1}, v{s1 + 2}", [f"v{dst}", f"v{s1 + 1}", f"v{s1 + 2}"], [f"v{dst}"])
        a.valu(f"v_max_f32 v{dst}, v{dst}, v{s1 + 3}", [f"v{dst}", f"v{s1 + 3}"], [f"v{dst}"])
        self.xlane(dst, t, "v_max_f32")

    def xlane(self, dst, t, op):
        a = self.a
        for sw in ("v_permlane16_swap_b32", "v_permlane32_swap_b32"):
            a.valu(f"v_mov_b32 v{t}, v{dst}", [f"v{dst}"], [f"v{t}"])
            a.add(Inst(f"{sw} v{dst}, v{t}", "perm", [f"v{dst}", f"v{t}"], [f"v{dst}", f"v{t}"]))
            a.valu(f"{op} v{dst}, v{dst}, v{t}", [f"v{dst}", f"v{t}"], [f"v{dst}"])

    def slow(self, cur):
        a = self.a
        nxt = 1 - cur
        a.label(f"L_slow_{cur}")
        a.nop(16)
        DL, FF, T0 = 150, 154, 158
        for qb in range(4):
            self.rowmax(cur, qb, DL + qb, T0)
            a.valu(f"v_ceil_f32 v{DL + qb}, v{DL + qb}", [f"v{DL + qb}"], [f"v{DL + qb}"])
            a.valu(f"v_max_f32 v{DL + qb}, 0, v{DL + qb}", [f"v{DL + qb}"], [f"v{DL + qb}"])
            a.trans(f"v_exp_f32 v{FF + qb}, -v{DL + qb}", [f"v{DL + qb}"], [f"v{FF + qb}"])
        for qb in range(4):
            d, f = DL + qb, FF + qb
            for r in range(4):
                x = NEGM(qb) + r
                a.valu(f"v_sub_f32 v{x}, v{x}, v{d}", [f"v{x}", f"v{d}"], [f"v{x}"])
            for b in (cur, nxt):
                for tb in range(2):
                    for r in range(4):
                        x = S(b, tb, qb) + r
                        a.valu(f"v_sub_f32 v{x}, v{x}, v{d}", [f"v{x}", f"v{d}"], [f"v{x}"])
            a.valu(f"v_mul_f32 v{L(qb)}, v{L(qb)}, v{f}", [f"v{L(qb)}", f"v{f}"], [f"v{L(qb)}"])
            for db in range(8):
                for r in range(4):
                    x = O(db, qb) + r
                    t = 160 + ((db * 4 + r) % 8)
                    a.valu(f"v_accvgpr_read_b32 v{t}, a{x}", [f"a{x}"], [f"v{t}"])
                    a.valu(f"v_mul_f32 v{t}, v{t}, v{f}", [f"v{t}", f"v{f}"], [f"v{t}"])
                    a.valu(f"v_accvgpr_write_b32 a{x}, v{t}", [f"v{t}"], [f"a{x}"])
        for pi in range(16):
            self.sm_exp(cur, pi, 0)
            self.sm_exp(cur, pi, 1)
            self.sm_add_a(cur, pi)
            self.sm_add_b(cur, pi)
            self.sm_cvt(cur, pi)
        self.sm_exp(nxt, 0, 0)
        self.sm_exp(nxt, 0, 1)
        a.nop(4)
        a.other("s_setpc_b64 s[86:87]", ["s86", "s87"])

    def unpack(self, src, dst):
        a = self.a
        for k in range(4):
            a.valu(f"v_lshlrev_b32 v{dst + 2 * k}, 16, v{src + k}", [f"v{src + k}"], [f"v{dst + 2 * k}"])
            a.valu(f"v_and_b32 v{dst + 2 * k + 1}, 0xffff0000, v{src + k}", [f"v{src + k}"], [f"v{dst + 2 * k + 1}"])

    def rnd(self, x0, T):
        a = self.a
        for k in range(4):
            self.cvt(T + k, x0 + 2 * k, x0 + 2 * k + 1)
        for k in range(4):
            a.valu(f"v_lshlrev_b32 v{x0 + 2 * k}, 16, v{T + k}", [f"v{T + k}"], [f"v{x0 + 2 * k}"])
            a.valu(f"v_and_b32 v{x0 + 2 * k + 1}, 0xffff0000, v{T + k}", [f"v{T + k}"], [f"v{x0 + 2 * k + 1}"])

    def pk(self, op, x, y, bcast, neg=False):
        mods = ""
        if bcast:
            ye = y & ~1
            sel = y & 1
            mods += f" op_sel:[0,{sel}] op_sel_hi:[1,{sel}]"
            ys = f"v[{ye}:{ye + 1}]"
        else:
            ys = f"v[{y}:{y + 1}]"
        if neg:
            mods += " neg_lo:[0,1] neg_hi:[0,1]"
        self.a.valu(f"{op} v[{x}:{x + 1}], v[{x}:{x + 1}], {ys}{mods}", [f"v[{x}:{x + 1}]", ys], [f"v[{x}:{x + 1}]"])

    def tile_sregs(self, tile_s):
        a = self.a
        a.salu("s_lshl_b32 s75, s72, 11", ["s72"], ["s75"])
        a.salu(f"s_lshl_b32 s76, {tile_s}, 6", [tile_s], ["s76"])
        a.salu("s_add_u32 s75, s75, s76", ["s75", "s76"], ["s75"])
        a.salu("s_lshl_b32 s76, s72, 5", ["s72"], ["s76"])
        a.salu(f"s_add_u32 s76, s76, {tile_s}", ["s76", tile_s], ["s76"])
        a.salu("s_lshl_b32 s76, s76, 8", ["s76"], ["s76"])
        a.salu("s_lshl_b32 s77, s16, 6", ["s16"], ["s77"])
        a.salu("s_add_u32 s76, s76, s77", ["s76", "s77"], ["s76"])
        a.salu("s_lshr_b32 s77, s16, 1", ["s16"], ["s77"])
        a.salu("s_lshl_b32 s77, s77, 5", ["s77"], ["s77"])
        a.salu("s_add_u32 s77, s77, s75", ["s77", "s75"], ["s77"])
        a.salu("s_lshl_b32 s79, s77, 9", ["s77"], ["s79"])
        a.salu("s_lshl_b32 s77, s77, 1", ["s77"], ["s77"])
        a.salu("s_and_b32 s78, s16, 1", ["s16"], ["s78"])
        a.salu("s_lshl_b32 s78, s78, 8", ["s78"], ["s78"])
        a.salu("s_add_u32 s79, s79, s78", ["s79", "s78"], ["s79"])
        a.salu("s_lshl_b32 s78, s75, 9", ["s75"], ["s78"])
        a.salu("s_lshl_b32 s80, s16, 7", ["s16"], ["s80"])
        a.salu("s_add_u32 s78, s78, s80", ["s78", "s80"], ["s78"])

    def load_k(self, KX, KP, tag, pol=" nt"):
        a = self.a
        self.vmem(f"buffer_load_dwordx4 v[{KP}:{KP + 3}], v8, s[52:55], s76 offen", ["v8", "s[52:55]", "s76"], [f"v[{KP}:{KP + 3}]"], tag + "s")
        self.vmem(f"buffer_load_dwordx4 v[{KP + 4}:{KP + 7}], v8, s[56:59], s76 offen", ["v8", "s[56:59]", "s76"], [f"v[{KP + 4}:{KP + 7}]"], tag + "s")
        for e in range(4):
            for hh in range(2):
                d = f"v[{KX + 8 * e + 4 * hh}:{KX + 8 * e + 4 * hh + 3}]"
                self.vmem(f"buffer_load_dwordx4 {d}, v6, s[44:47], s78 offen offset:{16 * hh}{pol}", ["v6", "s[44:47]", "s78"], [d], f"{tag}{e}")
            if e < 3:
                a.salu("s_add_u32 s78, s78, 8192", ["s78"], ["s78"])

    def load_v(self, VX, VP, tag, pol=" nt"):
        a = self.a
        for (p, srd) in ((VP, "s[60:63]"), (VP + 4, "s[64:67]")):
            for hh in range(2):
                self.vmem(f"buffer_load_dwordx2 v[{p + 2 * hh}:{p + 2 * hh + 1}], v9, {srd}, s77 offen offset:{32 * hh}",
                          ["v9", srd, "s77"], [f"v[{p + 2 * hh}:{p + 2 * hh + 1}]"], tag + "s")
        for j in range(8):
            if j == 4:
                a.salu("s_add_u32 s79, s79, 8192", ["s79"], ["s79"])
            d = f"v[{VX + 4 * j}:{VX + 4 * j + 3}]"
            self.vmem(f"buffer_load_dwordx4 {d}, v7, s[48:51], s79 offen offset:{512 * (j & 3)}{pol}", ["v7", "s[48:51]", "s79"], [d], tag)

    def proc_k(self, KX, KP, tag, SC, T, CS, outs, sink):
        a = self.a
        self.wait_vm(tag + "s")
        self.unpack(KP, SC)
        self.unpack(KP + 4, SC + 8)
        for e in range(4):
            x0 = KX + 8 * e
            self.wait_vm(f"{tag}{e}")
            for k in range(8):
                a.valu(f"v_cvt_f32_i32 v{x0 + k}, v{x0 + k}", [f"v{x0 + k}"], [f"v{x0 + k}"])
            self.rnd(x0, T)
            for k in range(4):
                self.pk("v_pk_add_f32", x0 + 2 * k, SC + 8 + 2 * k, False, neg=True)
            self.rnd(x0, T)
            for k in range(4):
                self.pk("v_pk_mul_f32", x0 + 2 * k, SC + 2 * k, False)
            self.rnd(x0, T)
            for k in range(4):
                self.pk("v_pk_mul_f32", x0 + 2 * k, CS, False)
            o = outs[self.outi % len(outs)]
            self.outi += 1
            for k in range(4):
                self.cvt(o + k, x0 + 2 * k, x0 + 2 * k + 1)
            sink(e, o)

    def proc_v(self, VX, VP, tag, SC, T, outs, sink):
        a = self.a
        self.wait_vm(tag + "s")
        self.unpack(VP, SC)
        self.unpack(VP + 4, SC + 8)
        self.wait_vm(tag)
        for j2 in range(4):
            x0 = VX + 8 * j2
            for k in range(8):
                a.valu(f"v_cvt_f32_i32 v{x0 + k}, v{x0 + k}", [f"v{x0 + k}"], [f"v{x0 + k}"])
            self.rnd(x0, T)
            for k in range(4):
                self.pk("v_pk_add_f32", x0 + 2 * k, SC + 8 + 2 * j2 + (k >> 1), True, neg=True)
            self.rnd(x0, T)
            for k in range(4):
                self.pk("v_pk_mul_f32", x0 + 2 * k, SC + 2 * j2 + (k >> 1), True)
        for c in range(4):
            o = outs[self.outi % len(outs)]
            self.outi += 1
            for k in range(4):
                self.cvt(o + k, VX + 4 * (2 * k) + c, VX + 4 * (2 * k + 1) + c)
            sink(c, o)

    def gdest(self, tile_s):
        a = self.a
        a.salu("s_lshl_b32 s81, s72, 19", ["s72"], ["s81"])
        a.salu(f"s_lshl_b32 s80, {tile_s}, 14", [tile_s], ["s80"])
        a.salu("s_add_u32 s81, s81, s80", ["s81", "s80"], ["s81"])
        a.salu("s_lshl_b32 s80, s16, 12", ["s16"], ["s80"])
        a.salu("s_add_u32 s82, s81, s80", ["s81", "s80"], ["s82"])
        a.salu(f"s_add_u32 s82, s82, {VWS}", ["s82"], ["s82"])
        a.salu("s_lshl_b32 s80, s16, 10", ["s16"], ["s80"])
        a.salu("s_add_u32 s81, s81, s80", ["s81", "s80"], ["s81"])

    def gstore_k(self, e, o):
        self.vmem(f"buffer_store_dwordx4 v[{o}:{o + 3}], v1, s[8:11], s81 offen{WSTORE}", [f"v[{o}:{o + 3}]", "v1", "s[8:11]", "s81"], [], "st", store=True)
        if e < 3:
            self.a.salu("s_add_u32 s81, s81, 4096", ["s81"], ["s81"])

    def gstore_v(self, c, o):
        self.vmem(f"buffer_store_dwordx4 v[{o}:{o + 3}], v1, s[8:11], s82 offen offset:{1024 * c}{WSTORE}",
                  [f"v[{o}:{o + 3}]", "v1", "s[8:11]", "s82"], [], "st", store=True)

    def lds_write(self, addr, off, o):
        self.a.add(Inst(f"ds_write_b128 {addr}, v[{o}:{o + 3}] offset:{off}", "store", [addr, f"v[{o}:{o + 3}]"], []))

    def fallback_deq(self):
        a = self.a
        a.label("L_deq")
        self.vm = []
        self.outi = 0
        X, PK_, SC, T, CS, OUTS = 168, 200, 208, 224, 228, [232, 236, 240, 244]
        a.valu(f"v_mov_b32 v{CS}, 0x{f32bits(CSCALE):08x}", [], [f"v{CS}"])
        a.valu(f"v_mov_b32 v{CS + 1}, 0x{f32bits(CSCALE):08x}", [], [f"v{CS + 1}"])
        self.tile_sregs("s74")
        self.gdest("s74")
        self.load_k(X, PK_, "k")
        self.proc_k(X, PK_, "k", SC, T, CS, OUTS, self.gstore_k)
        a.other("s_waitcnt vmcnt(0)")
        self.load_v(X, PK_, "v")
        self.proc_v(X, PK_, "v", SC, T, OUTS, self.gstore_v)
        a.other("s_waitcnt vmcnt(0)")
        a.other("s_setpc_b64 s[84:85]", ["s84", "s85"])

    def gen(self):
        a = self.a
        a.label(MAIN)
        a.salu("s_cmp_ge_u32 s2, 256", ["s2"], ["scc"])
        a.other("s_cbranch_scc1 L_done")
        self.stamp(0, True)
        a.salu("s_load_dwordx16 s[24:39], s[0:1], 0", [], ["s[24:39]"])
        a.salu("s_load_dwordx4 s[40:43], s[0:1], 64", [], ["s[40:43]"])
        a.valu("v_lshrrev_b32 v3, 6, v0", ["v0"], ["v3"])
        a.valu("v_and_b32 v0, 63, v0", ["v0"], ["v0"])
        a.valu("v_readfirstlane_b32 s16, v3", ["v3"], ["s16"])
        a.valu("v_lshlrev_b32 v1, 4, v0", ["v0"], ["v1"])
        a.valu("v_add_u32 v2, 0x10000, v1", ["v1"], ["v2"])
        a.valu(f"v_add_u32 v3, {LDS_K01}, v1", ["v1"], ["v3"])
        a.valu("v_and_b32 v4, 15, v0", ["v0"], ["v4"])
        a.valu("v_lshrrev_b32 v5, 4, v0", ["v0"], ["v5"])
        a.valu("v_lshlrev_b32 v6, 9, v4", ["v4"], ["v6"])
        a.valu("v_lshl_add_u32 v6, v5, 5, v6", ["v5", "v6"], ["v6"])
        a.valu("v_and_b32 v7, 2, v4", ["v4"], ["v7"])
        a.valu("v_lshlrev_b32 v7, 2, v7", ["v7"], ["v7"])
        a.valu("v_lshrrev_b32 v8, 2, v4", ["v4"], ["v8"])
        a.valu("v_lshl_add_u32 v7, v8, 1, v7", ["v8", "v7"], ["v7"])
        a.valu("v_and_b32 v8, 1, v4", ["v4"], ["v8"])
        a.valu("v_add_u32 v7, v7, v8", ["v7", "v8"], ["v7"])
        a.valu("v_lshlrev_b32 v7, 4, v7", ["v7"], ["v7"])
        a.valu("v_lshl_add_u32 v7, v5, 11, v7", ["v5", "v7"], ["v7"])
        a.valu("v_lshlrev_b32 v8, 4, v5", ["v5"], ["v8"])
        a.valu("v_lshlrev_b32 v9, 3, v5", ["v5"], ["v9"])
        a.valu("v_lshlrev_b32 v10, 8, v4", ["v4"], ["v10"])
        a.valu("v_lshl_add_u32 v10, v5, 4, v10", ["v5", "v10"], ["v10"])
        a.valu(f"v_mov_b32 v14, {LDS_MSG}", [], ["v14"])
        a.salu("s_and_b32 s72, s2, 7", ["s2"], ["s72"])
        a.salu("s_lshr_b32 s73, s2, 3", ["s2"], ["s73"])
        a.salu("s_and_b32 s75, s73, 3", ["s73"], ["s75"])
        a.salu("s_lshl_b32 s88, s72, 2", ["s72"], ["s88"])
        a.salu("s_add_u32 s88, s88, s75", ["s88", "s75"], ["s88"])
        a.salu("s_lshr_b32 s75, s73, 2", ["s73"], ["s75"])
        a.salu("s_lshl_b32 s88, s88, 19", ["s88"], ["s88"])
        a.salu("s_lshl_b32 s75, s75, 16", ["s75"], ["s75"])
        a.salu("s_add_u32 s88, s88, s75", ["s88", "s75"], ["s88"])
        a.salu("s_lshl_b32 s75, s16, 14", ["s16"], ["s75"])
        a.salu("s_add_u32 s88, s88, s75", ["s88", "s75"], ["s88"])
        a.salu("s_add_u32 s89, s88, 4096", ["s88"], ["s89"])
        a.salu("s_add_u32 s90, s88, 8192", ["s88"], ["s90"])
        a.salu("s_add_u32 s91, s88, 12288", ["s88"], ["s91"])
        a.salu(f"s_mov_b32 s18, 0x{f32bits(THR):08x}", [], ["s18"])
        a.salu("s_lshl_b32 s20, s16, 13", ["s16"], ["s20"])
        a.salu("s_lshl_b32 s23, s72, 19", ["s72"], ["s23"])
        a.salu("s_and_b32 s75, s16, 1", ["s16"], ["s75"])
        a.salu("s_lshr_b32 s76, s16, 1", ["s16"], ["s76"])
        a.salu("s_lshl_b32 s77, s75, 1", ["s75"], ["s77"])
        a.salu("s_add_u32 s76, s76, s77", ["s76", "s77"], ["s76"])
        a.salu("s_lshl_b32 s77, s73, 1", ["s73"], ["s77"])
        a.salu("s_add_u32 s76, s76, s77", ["s76", "s77"], ["s76"])
        a.salu("s_lshl_b32 s22, s76, 13", ["s76"], ["s22"])
        a.salu("s_and_b32 s22, s22, 0x7ffff", ["s22"], ["s22"])
        a.salu("s_cmp_eq_u32 s75, 1", ["s75"], ["scc"])
        a.salu(f"s_cselect_b32 s76, 0, {VWS}", ["scc"], ["s76"])
        a.salu("s_add_u32 s23, s23, s76", ["s23", "s76"], ["s23"])
        a.salu("s_add_u32 s74, s73, 1", ["s73"], ["s74"])
        a.salu("s_and_b32 s74, s74, 31", ["s74"], ["s74"])
        a.salu("s_add_u32 s83, s73, 2", ["s73"], ["s83"])
        a.salu("s_and_b32 s83, s83, 31", ["s83"], ["s83"])
        a.salu("s_lshl_b32 s75, s16, 10", ["s16"], ["s75"])
        a.valu("v_add_u32 v11, s75, v1", ["s75", "v1"], ["v11"])
        a.valu("v_add_u32 v13, s75, v3", ["s75", "v3"], ["v13"])
        a.salu("s_lshr_b32 s75, s16, 1", ["s16"], ["s75"])
        a.salu("s_lshl_b32 s75, s75, 14", ["s75"], ["s75"])
        a.salu("s_and_b32 s76, s16, 1", ["s16"], ["s76"])
        a.salu("s_lshl_b32 s76, s76, 12", ["s76"], ["s76"])
        a.salu("s_add_u32 s75, s75, s76", ["s75", "s76"], ["s75"])
        a.valu("v_add_u32 v15, s75, v1", ["s75", "v1"], ["v15"])
        a.salu("s_lshl_b32 s76, s72, 5", ["s72"], ["s76"])
        a.valu("v_mov_b32 v12, s76", ["s76"], ["v12"])
        a.other("s_waitcnt lgkmcnt(0)")
        for base, lo, nb in ((4, 24, 16777216), (8, 42, WS_BYTES), (12, 38, 16777216), (44, 26, 8388608), (48, 28, 8388608),
                             (52, 30, 65536), (56, 32, 65536), (60, 34, 32768), (64, 36, 32768), (68, 40, 256)):
            a.salu(f"s_mov_b32 s{base}, s{lo}", [], [f"s{base}"])
            a.salu(f"s_mov_b32 s{base + 1}, s{lo + 1}", [], [f"s{base + 1}"])
            a.salu(f"s_mov_b32 s{base + 2}, {nb}", [], [f"s{base + 2}"])
            a.salu(f"s_mov_b32 s{base + 3}, 0x00020000", [], [f"s{base + 3}"])
        K0, V0 = 16, 48
        KP0, VP0 = 176, 184
        SC, T, CS, OUTS = 216, 232, 240, [244, 248, 252]
        self.vm = []
        self.outi = 0
        self.tile_sregs("s73")
        self.load_k(K0, KP0, "k0")
        self.load_v(V0, VP0, "v0")
        if QEARLY:
            for qb in range(4):
                for ks in range(4):
                    d = rr("a", Q(qb, ks), 4)
                    so = ["s88", "s89", "s90", "s91"][qb]
                    self.vmem(f"buffer_load_dwordx4 {d}, v10, s[4:7], {so} offen offset:{64 * ks} nt", ["v10", "s[4:7]", so], [d], "q")
        self.gdest("s73")
        a.valu(f"v_mov_b32 v{CS}, 0x{f32bits(CSCALE):08x}", [], [f"v{CS}"])
        a.valu(f"v_mov_b32 v{CS + 1}, 0x{f32bits(CSCALE):08x}", [], [f"v{CS + 1}"])
        for r in range(128):
            a.valu(f"v_accvgpr_write_b32 a{r}, 0", [], [f"a{r}"])

        def sink_k0(e, o):
            self.gstore_k(e, o)
            self.lds_write("v13", 4096 * e, o)

        self.proc_k(K0, KP0, "k0", SC, T, CS, OUTS, sink_k0)
        self.proc_v(V0, VP0, "v0", SC, T, OUTS, self.gstore_v)
        self.stamp(1, True)
        if not QEARLY:
            for qb in range(4):
                for ks in range(4):
                    d = rr("a", Q(qb, ks), 4)
                    so = ["s88", "s89", "s90", "s91"][qb]
                    self.vmem(f"buffer_load_dwordx4 {d}, v10, s[4:7], {so} offen offset:{64 * ks} nt", ["v10", "s[4:7]", so], [d], "q")
        for qb in range(4):
            a.valu(f"v_mov_b32 v{L(qb)}, 0", [], [f"v{L(qb)}"])
        a.other("s_waitcnt vmcnt(0) lgkmcnt(0)" if QEARLY else "s_waitcnt vmcnt(16) lgkmcnt(0)")
        self.stamp(4, True)
        a.other("s_barrier")
        self.stamp(2, True)
        a.salu("s_cmp_lg_u32 s16, 0", ["s16"], ["scc"])
        a.other("s_cbranch_scc1 L_noflag")
        a.salu("s_lshl_b32 s75, 1, s73", ["s73"], ["s75"])
        a.valu("v_mov_b32 v13, s75", ["s75"], ["v13"])
        a.salu("s_mov_b64 s[78:79], exec", [], ["s78", "s79"])
        a.salu("s_mov_b64 exec, 1", [], ["exec"])
        a.add(Inst("buffer_atomic_or v13, v12, s[68:71], 0 offen sc1", "store", ["v13", "v12", "s[68:71]"], []))
        a.salu("s_mov_b64 exec, s[78:79]", ["s78", "s79"], ["exec"])
        a.label("L_noflag")
        for f in range(16):
            d = rr("a", 192 + 4 * f, 4)
            a.add(Inst(f"ds_read_b128 {d}, v3 offset:{1024 * f}", "ds", ["v3"], [d]))
        a.other("s_waitcnt vmcnt(0) lgkmcnt(8)")
        self.stamp(3, True)
        for f in range(8):
            tb, ks = f >> 2, f & 3
            for qb in range(4):
                d = rr("v", S(0, tb, qb), 4)
                self.mfma(d, rr("a", 192 + 4 * f, 4), rr("a", Q(qb, ks), 4), "0" if ks == 0 else d)
        a.nop(8)
        for qb in range(4):
            self.rowmax(0, qb, 150 + qb, 158)
        for qb in range(4):
            for r in range(4):
                a.valu(f"v_sub_f32 v{NEGM(qb) + r}, 0, v{150 + qb}", [f"v{150 + qb}"], [f"v{NEGM(qb) + r}"])
            for tb in range(2):
                for r in range(4):
                    x = S(0, tb, qb) + r
                    a.valu(f"v_sub_f32 v{x}, v{x}, v{150 + qb}", [f"v{x}", f"v{150 + qb}"], [f"v{x}"])
        a.other("s_waitcnt lgkmcnt(0)")
        pi = 0
        for f in range(8):
            tb, ks = f >> 2, f & 3
            for qb in range(4):
                d = rr("v", S(1, tb, qb), 4)
                self.mfma(d, rr("a", 192 + 4 * (8 + f), 4), rr("a", Q(qb, ks), 4),
                          rr("v", NEGM(qb), 4) if ks == 0 else d)
                if qb % 2 == 0:
                    self.sm_exp(0, pi, 0)
                    self.sm_exp(0, pi, 1)
                else:
                    self.sm_add_a(0, pi)
                    self.sm_add_b(0, pi)
                    self.sm_cvt(0, pi)
                    pi += 1
        assert pi == 16
        self.sm_exp(1, 0, 0)
        self.sm_exp(1, 0, 1)
        self.stamp(12, True)
        self.flag_wait()
        self.stamp(13, True)
        for sl in range(3):
            self.dma_addr()
            for hf in range(2):
                a.salu(f"s_add_u32 m0, s20, {sl * 32768 + hf * 4096}", ["s20"], ["m0", "scc"])
                a.nop(1)
                for k in range(4):
                    self.dma_piece("s19" if hf == 0 else "s21", k)
        a.other("s_waitcnt vmcnt(16)")
        a.other("s_barrier")
        for F in range(R - 1):
            self.ds_read_frag(F)
        self.wait_frag(0)
        self.stamp(5, True)
        self.stamp(6)
        if STAMPS:
            a.other("s_waitcnt lgkmcnt(0)")
        a.salu("s_mov_b32 s17, 0", [], ["s17"])
        if "--nochkv" in sys.argv:
            a.salu("s_mov_b64 vcc, 0", [], ["vcc"])
        a.raw(".p2align 6")
        a.label("L_loop")
        for i in range(4):
            self.iteration(i)
        a.salu("s_add_u32 s17, s17, 1", ["s17"], ["s17", "scc"])
        a.salu("s_cmp_lt_u32 s17, 7", ["s17"], ["scc"])
        a.other("s_cbranch_scc1 L_loop")
        self.reads = [F + 24 * 32 for F in self.reads]
        self.iteration(28, dma=True, vm=8)
        self.iteration(29, dma=False, vm=8)
        self.iteration(30, dma=False, vm=0)
        self.iteration(31, dma=False, barrier=False)
        self.stamp(7, True)
        self.stamp(8)
        for qb in range(4):
            self.xlane(L(qb), 158, "v_add_f32")
        for qb in range(4):
            a.trans(f"v_rcp_f32 v{150 + 2 * qb}, v{L(qb)}", [f"v{L(qb)}"], [f"v{150 + 2 * qb}"])
        a.nop(4)
        k = 0
        for half in range(2):
            for qb in range(4):
                so = ["s88", "s89", "s90", "s91"][qb]
                tb_ = 176 + (k % 3) * 24
                k += 1
                pkb = tb_ + 16
                for r in range(4):
                    for c in range(4):
                        t = tb_ + 4 * r + c
                        x = O(4 * half + c, qb) + r
                        a.valu(f"v_accvgpr_read_b32 v{t}, a{x}", [f"a{x}"], [f"v{t}"])
                il = 150 + 2 * qb
                for j in range(8):
                    t = tb_ + 2 * j
                    a.valu(f"v_pk_mul_f32 v[{t}:{t + 1}], v[{t}:{t + 1}], v[{il}:{il + 1}] op_sel:[0,0] op_sel_hi:[1,0]",
                           [f"v[{t}:{t + 1}]", f"v{il}"], [f"v[{t}:{t + 1}]"])
                for j in range(8):
                    self.cvt(pkb + j, tb_ + 2 * j, tb_ + 2 * j + 1)
                for hh in range(2):
                    d = rr("v", pkb + 4 * hh, 4)
                    a.add(Inst(f"buffer_store_dwordx4 {d}, v10, s[12:15], {so} offen offset:{128 * half + 64 * hh}{OSTORE}", "store",
                               [d, "v10", "s[12:15]", so], []))
        self.stamp(9, True)
        self.dump_stamps(14)
        a.label("L_done")
        a.other("s_endpgm")
        for k, cur in self.tramps:
            a.label(f"L_tramp_{k}")
            a.other(f"s_call_b64 s[86:87], L_slow_{cur}", [], ["s86", "s87"])
            a.other(f"s_branch L_back_{k}")
        self.slow(0)
        self.slow(1)
        a.label("L_fb")
        a.salu("s_not_b32 s75, s17", ["s17"], ["s75"])
        a.salu("s_ff1_i32_b32 s74, s75", ["s75"], ["s74"])
        a.salu("s_bitset1_b32 s17, s74", ["s17", "s74"], ["s17"])
        a.other("s_call_b64 s[84:85], L_deq", [], ["s84", "s85"])
        a.nop(4)
        a.salu("s_cmp_lg_u32 s17, -1", ["s17"], ["scc"])
        a.other("s_cbranch_scc1 L_fb")
        a.other("s_waitcnt vmcnt(0)")
        a.other("s_barrier")
        a.other("s_branch L_ready")
        self.fallback_deq()
        n = a.pad_hazards(verbose="-v" in sys.argv)
        print("main: hazard pads inserted:", n, file=sys.stderr)
        return a.text()


HEADER = f"""; Kernarg layout for this problem (80 bytes, ptrs only, base s[0:1]):
; @launch grid=(256,1,1) block=(256,1,1) lds={LDS_BYTES}
.amdgcn_target "amdgcn-amd-amdhsa--gfx950"
.text
"""


def kd(name, vgpr, sgpr, accum):
    return f""".amdhsa_kernel {name}
  .amdhsa_next_free_vgpr {vgpr}
  .amdhsa_next_free_sgpr {sgpr}
  .amdhsa_accum_offset {accum}
  .amdhsa_group_segment_fixed_size 0
  .amdhsa_kernarg_size 80
  .amdhsa_user_sgpr_count 2
  .amdhsa_user_sgpr_kernarg_segment_ptr 1
  .amdhsa_system_sgpr_workgroup_id_x 1
  .amdhsa_float_denorm_mode_32 3
  .amdhsa_float_denorm_mode_16_64 3
.end_amdhsa_kernel
"""


def main():
    out = HEADER
    out += f".globl {MAIN}\n.p2align 8\n.type {MAIN},@function\n"
    out += Main().gen()
    out += '.section .rodata,"a"\n.p2align 6\n'
    out += kd(MAIN, 512, 102, 256)
    path = sys.argv[1] if len(sys.argv) > 1 and not sys.argv[1].startswith("-") else f"cdna_kernels/{NAME}.s"
    open(path, "w").write(out)
    print("wrote", path, len(out), "bytes", file=sys.stderr)


if __name__ == "__main__":
    main()
```
